```python
import torch

def _softmax(x, axis=-1):
    return torch.softmax(x, dim=axis)
def _gelu(x):
    return torch.nn.functional.gelu(x, approximate="tanh")
def _silu(x):
    return torch.nn.functional.silu(x)
def _sigmoid(x):
    return torch.sigmoid(x)
def _layernorm(x, axis=-1, eps=1e-5):
    m = x.mean(dim=axis, keepdim=True)
    v = x.var(dim=axis, keepdim=True, unbiased=False)
    return (x - m) / torch.sqrt(v + eps)
def _scatter_add(tgt, idx, src, axis=0):
    return tgt.clone().index_add_(axis, idx, src)
def _segment_sum(src, seg, n):
    out = torch.zeros((n,) + src.shape[1:], dtype=src.dtype)
    return out.index_add_(0, seg, src)
def _pad(x, pw):
    flat = tuple(v for pair in reversed(pw) for v in pair)
    return torch.nn.functional.pad(x, flat)

kernel_name = 'standalone__kv_cache_quant_int4_int2_kv_with_per_channel_or_per_token_scales__sampling'

def setup_inputs():

    _w = (lambda a: (lambda t: t.to(torch.bfloat16) if t.is_floating_point() else t)(torch.as_tensor(a)))
    B = 8
    Sq = 32
    Skv = 8192
    Hq = 32
    Hkv = 8
    Dh = 128
    bits = 4
    G = 64
    if G <= 0 or G >= Skv:
        G = max(1, Skv // 2)
    Skv = (Skv // G) * G
    ngk = Skv // G
    qmax = (1 << bits) - 1
    return {
        "q": _w((lambda *s: torch.randn(*s, dtype=torch.bfloat16) * 1.6)(B, Hq, Sq, Dh)),
        "qk": _w(torch.randint(0, qmax + 1, (B, Hkv, Skv, Dh)).to(torch.int32)),
        "qv": _w(torch.randint(0, qmax + 1, (B, Hkv, Skv, Dh)).to(torch.int32)),
        "k_scales": _w(torch.abs((lambda *s: torch.randn(*s, dtype=torch.bfloat16) * 1.6)(B, Hkv, ngk, Dh)) * 0.05 + 0.02),
        "k_zeros": _w((lambda *s: torch.randn(*s, dtype=torch.bfloat16) * 1.6)(B, Hkv, ngk, Dh) + float(qmax) / 2.0),
        "v_scales": _w(torch.abs((lambda *s: torch.randn(*s, dtype=torch.bfloat16) * 0.05)(B, Hkv, Skv, 1)) * 0.05 + 0.02),
        "v_zeros": _w((lambda *s: torch.randn(*s, dtype=torch.bfloat16) * 0.05)(B, Hkv, Skv, 1) + float(qmax) / 2.0),
    }

def reference(q, qk, qv, k_scales, k_zeros, v_scales, v_zeros):
    B, Hq, Sq, Dh = q.shape
    Hkv, Skv = qk.shape[1], qk.shape[2]
    ngk = k_scales.shape[2]
    G = Skv // ngk
    ks = (lambda x, n, axis: torch.repeat_interleave(x, n, dim=axis))(k_scales, G, axis=2)
    kz = (lambda x, n, axis: torch.repeat_interleave(x, n, dim=axis))(k_zeros, G, axis=2)
    k = ((lambda x, dt: x.to(dt))(qk, q.dtype) - kz) * ks
    v = ((lambda x, dt: x.to(dt))(qv, q.dtype) - v_zeros) * v_scales
    rep = Hq // Hkv
    if rep > 1:
        k = (lambda x, n, axis: torch.repeat_interleave(x, n, dim=axis))(k, rep, axis=1)
        v = (lambda x, n, axis: torch.repeat_interleave(x, n, dim=axis))(v, rep, axis=1)
    scale = float(Dh) ** -0.5
    logits = torch.einsum("bhqd,bhkd->bhqk", q, k) * scale
    p = _softmax(logits, axis=-1)
    o = torch.einsum("bhqk,bhkd->bhqd", p, v)
    return o
```

```python
import sys, struct, math
KNAME = "standalone__kv_cache_quant_int4_int2_kv_with_per_channel_or_per_token_scales__sampling_kernel"
HDR = open("standalone__kv_cache_quant_int4_int2_kv_with_per_channel_or_per_token_scales__sampling.s.ref").read().split("; Override")[0]

def f32bits(x): return struct.unpack("<I", struct.pack("<f", x))[0]

O=0; Q=64; S=96; KF=112; P=144; RA=152; RB=184
M=216; LS=217; NMC=218; ALPHA=219
T=220
VKRD=228; VVRD=229; VWR=230; VCST=231; VOFFA=232; VOFFB=233; VLANE=234; VTID=235; VL32=236; VH=237
VX=238
STAGE=33792; KBYTES=17408
KC=67584; VC=100352; TKT=116736; LDS_TOTAL=116736+1024
SLOT=8704
C_SCALE = (128 ** -0.5) * math.log2(math.e) * 2.0**49

def gen(name, nt="nt"):
    L=[]; A=L.append
    A(HDR.rstrip())
    A(f"; @launch grid=(256,1,1) block=(512,1,1) lds={LDS_TOTAL}")
    A('.amdgcn_target "amdgcn-amd-amdhsa--gfx950"')
    A(".text"); A(f".globl {KNAME}"); A(".p2align 8"); A(f".type {KNAME},@function"); A(f"{KNAME}:")
    A("s_cmp_ge_u32 s2, 256"); A("s_cbranch_scc1 L_end")
    A("s_load_dwordx16 s[4:19], s[0:1], 0")
    A("s_load_dwordx4 s[20:23], s[0:1], 64")
    A(f"v_lshrrev_b32 v{T}, 6, v0")
    A(f"v_and_b32 v{VLANE}, 63, v0")
    A(f"v_mov_b32 v{VTID}, v0")
    A(f"v_readfirstlane_b32 s3, v{T}")
    A(f"v_and_b32 v{VL32}, 31, v0")
    A(f"v_bfe_u32 v{VH}, v0, 5, 1")
    A("s_and_b32 s36, s2, 63")
    A("s_lshr_b32 s37, s2, 6")
    A("s_and_b32 s38, s3, 3")
    A("s_lshr_b32 s39, s3, 2")
    A(f"s_mov_b32 s40, {f32bits(C_SCALE):#x}")
    A(f"s_mov_b32 s41, {f32bits(-C_SCALE):#x}")
    A("s_lshl_b32 s43, s36, 15")
    A("s_lshl_b32 s56, s37, 13")
    A("s_add_u32 s56, s56, s43")
    A("s_lshl_b32 s57, s36, 14")
    A("s_lshl_b32 s58, s37, 12")
    A("s_add_u32 s57, s57, s58")
    A("s_lshl_b32 s58, s36, 22")
    A("s_lshl_b32 s59, s37, 20")
    A("s_add_u32 s58, s58, s59")
    A("s_waitcnt lgkmcnt(0)")
    def srd(d, p, off, size):
        A(f"s_add_u32 s{d}, s{p}, s{off}"); A(f"s_addc_u32 s{d+1}, s{p+1}, 0")
        A(f"s_mov_b32 s{d+2}, {size}"); A(f"s_mov_b32 s{d+3}, 0x20000")
    srd(28, 10, 56, 8192)
    srd(32, 12, 56, 8192)
    srd(44, 14, 57, 4096)
    srd(48, 16, 57, 4096)
    srd(52, 4, 43, 32768)
    A("s_cmp_eq_u32 s39, 0")
    A("s_cselect_b32 s24, s6, s8"); A("s_cselect_b32 s25, s7, s9")
    A("s_add_u32 s24, s24, s58"); A("s_addc_u32 s25, s25, 0")
    A("s_mov_b32 s26, 0x100000"); A("s_mov_b32 s27, 0x20000")
    A(f"v_lshlrev_b32 v{T}, 4, v{VTID}")
    A(f"v_lshlrev_b32 v{T+1}, 3, v{VTID}")
    A(f"buffer_load_dwordx4 v[{KF}:{KF+3}], v{T}, s[28:31], 0 offen")
    A(f"buffer_load_dwordx4 v[{KF+4}:{KF+7}], v{T}, s[32:35], 0 offen")
    A(f"buffer_load_dwordx2 v[{KF+8}:{KF+9}], v{T+1}, s[44:47], 0 offen")
    A(f"buffer_load_dwordx2 v[{KF+10}:{KF+11}], v{T+1}, s[48:51], 0 offen")
    A("s_lshl_b32 s56, s38, 13")
    A(f"v_lshlrev_b32 v{T+2}, 8, v{VL32}")
    A(f"v_lshl_add_u32 v{T+2}, v{VH}, 4, v{T+2}")
    A(f"v_add_u32 v{T+2}, s56, v{T+2}")
    for s in range(8):
        A(f"buffer_load_dwordx4 v[{Q+4*s}:{Q+4*s+3}], v{T+2}, s[52:55], 0 offen offset:{s*32}")
    A("s_lshl_b32 s56, s39, 5")
    A(f"v_add_u32 v{T+3}, s56, v{VL32}")
    A("s_movk_i32 s57, 272")
    A(f"v_mul_lo_u32 v{VKRD}, v{T+3}, s57")
    A(f"v_lshl_add_u32 v{VKRD}, v{VH}, 4, v{VKRD}")
    A("s_lshl_b32 s56, s39, 13")
    A(f"v_lshlrev_b32 v{VVRD}, 4, v{VLANE}")
    A(f"v_add_u32 v{VVRD}, s56, v{VVRD}")
    A("s_cmp_eq_u32 s39, 0")
    A("s_cbranch_scc0 L_vsetup")
    A("s_lshl_b32 s56, s38, 13")
    A(f"v_lshlrev_b32 v{VOFFA}, 4, v{VLANE}")
    A(f"v_add_u32 v{VOFFA}, s56, v{VOFFA}")
    A("s_lshl_b32 s56, s38, 4")
    A(f"v_add_u32 v{T+3}, s56, v{VH}")
    A(f"v_mul_lo_u32 v{VWR}, v{T+3}, s57")
    A(f"v_lshl_add_u32 v{VWR}, v{VL32}, 3, v{VWR}")
    A(f"v_lshlrev_b32 v{VCST}, 4, v{VL32}")
    A(f"v_add_u32 v{VCST}, {KC}, v{VCST}")
    A("s_branch L_setup_done")
    A("L_vsetup:")
    A("s_lshl_b32 s56, s38, 13")
    A(f"v_lshlrev_b32 v{VOFFA}, 4, v{VL32}")
    A(f"v_lshl_add_u32 v{VOFFA}, v{VH}, 11, v{VOFFA}")
    A(f"v_add_u32 v{VOFFA}, s56, v{VOFFA}")
    A("s_lshl_b32 s56, s38, 12")
    A(f"v_lshlrev_b32 v{VWR}, 4, v{VLANE}")
    A(f"v_add_u32 v{VWR}, s56, v{VWR}")
    A("s_lshl_b32 s56, s38, 7")
    A(f"s_add_u32 s56, s56, {VC}")
    A(f"v_lshlrev_b32 v{VCST}, 5, v{VH}")
    A(f"v_add_u32 v{VCST}, s56, v{VCST}")
    A("L_setup_done:")
    A(f"v_add_u32 v{VOFFB}, 4096, v{VOFFA}")
    def rawload(role, R, n):
        step = 1024 if role=="K" else 512
        vo = VOFFA if n<4 else VOFFB
        A(f"buffer_load_dwordx4 v[{R+4*n}:{R+4*n+3}], v{vo}, s[24:27], 0 offen offset:{(n%4)*step} {nt}")
    def adv():
        A(f"v_add_u32 v{VOFFA}, 0x8000, v{VOFFA}"); A(f"v_add_u32 v{VOFFB}, 0x8000, v{VOFFB}")
    A("s_cmp_eq_u32 s39, 0")
    A("s_cbranch_scc0 L_vpre")
    for R in (RA, RB):
        for n in range(8): rawload("K", R, n)
        adv()
    A("s_branch L_pre_done")
    A("L_vpre:")
    for R in (RA, RB):
        for n in range(8): rawload("V", R, n)
        adv()
    A("L_pre_done:")
    for i in range(64): A(f"v_mov_b32 v{O+i}, 0")
    A(f"v_mov_b32 v{M}, {f32bits(-3.0e38):#x}")
    A(f"v_mov_b32 v{LS}, 0")
    A("s_waitcnt vmcnt(24)")
    for i in range(4):
        A(f"v_lshlrev_b32 v{T}, 16, v{KF+i}")
        A(f"v_and_b32 v{T+1}, 0xffff0000, v{KF+i}")
        A(f"v_lshlrev_b32 v{T+2}, 16, v{KF+4+i}")
        A(f"v_and_b32 v{T+3}, 0xffff0000, v{KF+4+i}")
        A(f"v_mul_f32 v{S+2*i}, 0x71800000, v{T}")
        A(f"v_mul_f32 v{S+2*i+1}, 0x71800000, v{T+1}")
        A(f"v_mul_f32 v{T+2}, v{T+2}, v{T}")
        A(f"v_mul_f32 v{T+3}, v{T+3}, v{T+1}")
        A(f"v_mul_f32 v{S+8+2*i}, 0xa7000000, v{T+2}")
        A(f"v_mul_f32 v{S+8+2*i+1}, 0xa7000000, v{T+3}")
    A(f"v_lshrrev_b32 v{T}, 4, v{VTID}")
    A(f"v_and_b32 v{T+1}, 15, v{VTID}")
    A(f"v_lshlrev_b32 v{T}, 10, v{T}")
    A(f"v_lshl_add_u32 v{T}, v{T+1}, 5, v{T}")
    A(f"v_add_u32 v{T}, {KC}, v{T}")
    A(f"ds_write_b128 v{T}, v[{S}:{S+3}]")
    A(f"ds_write_b128 v{T}, v[{S+4}:{S+7}] offset:16")
    A(f"ds_write_b128 v{T}, v[{S+8}:{S+11}] offset:512")
    A(f"ds_write_b128 v{T}, v[{S+12}:{S+15}] offset:528")
    for i in range(2):
        A(f"v_lshlrev_b32 v{T+4}, 16, v{KF+8+i}")
        A(f"v_and_b32 v{T+1}, 0xffff0000, v{KF+8+i}")
        A(f"v_lshlrev_b32 v{T+2}, 16, v{KF+10+i}")
        A(f"v_and_b32 v{T+3}, 0xffff0000, v{KF+10+i}")
        A(f"v_mul_f32 v{P+2*i}, 0x71800000, v{T+4}")
        A(f"v_mul_f32 v{P+2*i+1}, 0x71800000, v{T+1}")
        A(f"v_mul_f32 v{T+2}, v{T+2}, v{T+4}")
        A(f"v_mul_f32 v{T+3}, v{T+3}, v{T+1}")
        A(f"v_mul_f32 v{P+4+2*i}, 0xa7000000, v{T+2}")
        A(f"v_mul_f32 v{P+4+2*i+1}, 0xa7000000, v{T+3}")
    A(f"v_lshlrev_b32 v{T+5}, 5, v{VTID}")
    A(f"v_add_u32 v{T+5}, {VC}, v{T+5}")
    A(f"ds_write_b128 v{T+5}, v[{P}:{P+3}]")
    A(f"ds_write_b128 v{T+5}, v[{P+4}:{P+7}] offset:16")
    A("s_waitcnt vmcnt(16) lgkmcnt(0)")
    A("s_barrier")
    A("s_mov_b32 s42, 16")

    def cst_reads(role):
        if role=="K":
            A(f"ds_read_b128 v[{S}:{S+3}], v{VCST}")
            A(f"ds_read_b128 v[{S+4}:{S+7}], v{VCST} offset:512")
            A(f"v_add_u32 v{VCST}, 1024, v{VCST}")
            return 2
        else:
            A(f"ds_read_b128 v[{S}:{S+3}], v{VCST}")
            A(f"ds_read_b128 v[{S+4}:{S+7}], v{VCST} offset:16")
            A(f"ds_read_b128 v[{S+8}:{S+11}], v{VCST} offset:64")
            A(f"ds_read_b128 v[{S+12}:{S+15}], v{VCST} offset:80")
            A(f"v_add_u32 v{VCST}, 512, v{VCST}")
            return 4

    def produce(role, R, b):
        kb = b*STAGE; vb = kb + KBYTES
        A("s_waitcnt lgkmcnt(0)")
        if role=="K":
            for n in range(8):
                A("s_waitcnt vmcnt(15)")
                r = R+4*n
                for j in range(4):
                    A(f"v_fma_f32 v{r+j}, v{r+j}, v{S+j}, v{S+4+j}")
                A(f"v_cvt_pk_bf16_f32 v{KF+2*n}, v{r}, v{r+1}")
                A(f"v_cvt_pk_bf16_f32 v{KF+2*n+1}, v{r+2}, v{r+3}")
                rawload(role, R, n)
                A(f"ds_write_b64 v{VWR}, v[{KF+2*n}:{KF+2*n+1}] offset:{kb+n*544}")
        else:
            for p in range(4):
                A("s_waitcnt vmcnt(14)")
                for i in (2*p, 2*p+1):
                    r = R+4*i
                    cs = S + (i//4)*8 + i%4; cc = cs+4
                    for j in range(4):
                        A(f"v_fma_f32 v{r+j}, v{r+j}, v{cs}, v{cc}")
                for j in range(4):
                    A(f"v_cvt_pk_bf16_f32 v{KF+4*j+p}, v{R+8*p+j}, v{R+8*p+4+j}")
                rawload(role, R, 2*p); rawload(role, R, 2*p+1)
            for j in range(4):
                A(f"ds_write_b128 v{VWR}, v[{KF+4*j}:{KF+4*j+3}] offset:{vb+j*1024}")
        adv()

    def consume(role, b):
        kb = b*STAGE; vb = kb + KBYTES
        for s in range(8):
            A(f"ds_read_b128 v[{KF+4*s}:{KF+4*s+3}], v{VKRD} offset:{kb+s*32}")
        for s in range(8):
            A(f"s_waitcnt lgkmcnt({7-s})")
            c = "0" if s==0 else f"v[{S}:{S+15}]"
            A(f"v_mfma_f32_32x32x16_bf16 v[{S}:{S+15}], v[{KF+4*s}:{KF+4*s+3}], v[{Q+4*s}:{Q+4*s+3}], {c}")
        for x in range(8):
            A(f"ds_read_b128 v[{KF+4*x}:{KF+4*x+3}], v{VVRD} offset:{vb+x*1024}")
        A("s_nop 3")
        A(f"v_max3_f32 v{T}, v{S}, v{S+1}, v{S+2}")
        A(f"v_max3_f32 v{T+1}, v{S+3}, v{S+4}, v{S+5}")
        A(f"v_max3_f32 v{T+2}, v{S+6}, v{S+7}, v{S+8}")
        A(f"v_max3_f32 v{T+3}, v{S+9}, v{S+10}, v{S+11}")
        A(f"v_max3_f32 v{T}, v{T}, v{S+12}, v{S+13}")
        A(f"v_max3_f32 v{T+1}, v{T+1}, v{S+14}, v{S+15}")
        A(f"v_max3_f32 v{T}, v{T}, v{T+2}, v{T+3}")
        A(f"v_max3_f32 v{T}, v{T}, v{T+1}, v{M}")
        A(f"v_mov_b32 v{T+1}, v{T}")
        A("s_nop 1")
        A(f"v_permlane32_swap_b32 v{T}, v{T+1}")
        A("s_nop 0")
        A(f"v_max_f32 v{T}, v{T}, v{T+1}")
        A(f"v_sub_f32 v{T+2}, v{M}, v{T}")
        A(f"v_mul_f32 v{T+2}, s40, v{T+2}")
        A(f"v_mul_f32 v{NMC}, s41, v{T}")
        A(f"v_exp_f32 v{ALPHA}, v{T+2}")
        A(f"v_mov_b32 v{M}, v{T}")
        for r in range(16):
            A(f"v_fma_f32 v{S+r}, v{S+r}, s40, v{NMC}")
        for r in range(16):
            A(f"v_exp_f32 v{S+r}, v{S+r}")
        A(f"v_mul_f32 v{LS}, v{LS}, v{ALPHA}")
        for i in range(4):
            A(f"v_add_f32 v{T+i}, v{S+4*i}, v{S+4*i+1}")
        for i in range(4):
            A(f"v_add_f32 v{T+4+i}, v{S+4*i+2}, v{S+4*i+3}")
        for i in range(4):
            A(f"v_add_f32 v{T+i}, v{T+i}, v{T+4+i}")
        A(f"v_add_f32 v{T}, v{T}, v{T+1}")
        A(f"v_add_f32 v{T+2}, v{T+2}, v{T+3}")
        A(f"v_add_f32 v{LS}, v{LS}, v{T}")
        A(f"v_add_f32 v{LS}, v{LS}, v{T+2}")
        for k in range(8):
            A(f"v_cvt_pk_bf16_f32 v{P+k}, v{S+2*k}, v{S+2*k+1}")
        for i in range(64):
            A(f"v_mul_f32 v{O+i}, v{O+i}, v{ALPHA}")
        nc = cst_reads(role)
        A(f"s_waitcnt lgkmcnt({nc})")
        for s in range(2):
            for j in range(4):
                x = s*4+j
                A(f"v_mfma_f32_32x32x16_bf16 v[{O+16*j}:{O+16*j+15}], v[{KF+4*x}:{KF+4*x+3}], v[{P+4*s}:{P+4*s+3}], v[{O+16*j}:{O+16*j+15}]")

    def bar():
        A("s_waitcnt lgkmcnt(0)"); A("s_barrier")

    A("s_cmp_eq_u32 s39, 0")
    A("s_cbranch_scc0 L_V_entry")
    for role in ("K","V"):
        th = 0 if role=="K" else 1
        A(f"L_{role}_entry:")
        cst_reads(role)
        produce(role, RA, 0)
        bar()
        A(f"L_{role}_loop:")
        consume(role, 0)
        produce(role, RB, 1)
        bar()
        consume(role, 1)
        A("s_sub_u32 s42, s42, 1")
        A("s_cmp_eq_u32 s42, 0")
        A(f"s_cbranch_scc1 L_{role}_epi")
        produce(role, RA, 0)
        bar()
        A(f"s_branch L_{role}_loop")
        A(f"L_{role}_epi:")
        A("s_waitcnt vmcnt(0) lgkmcnt(0)")
        if role=="K":
            A("s_cmp_lg_u32 s3, 0")
            A("s_cbranch_scc1 L_notk")
            A("s_mov_b64 s[56:57], exec")
            A("s_mov_b64 exec, 1")
            A("s_lshl_b32 s58, s36, 2")
            A(f"v_mov_b32 v{VX}, s58")
            A(f"v_mov_b32 v{VX+1}, 1")
            A(f"global_atomic_add v{VX+2}, v{VX}, v{VX+1}, s[20:21] sc0")
            A("s_mov_b64 exec, s[56:57]")
            A("L_notk:")
        A(f"v_mov_b32 v{T}, v{LS}")
        A("s_nop 1")
        A(f"v_permlane32_swap_b32 v{LS}, v{T}")
        A("s_nop 0")
        A(f"v_add_f32 v{LS}, v{LS}, v{T}")
        for (dst, wexpr) in ((56, "s3"), (57, "s58")):
            if dst==57: A("s_xor_b32 s58, s3, 4")
            A(f"s_mul_i32 s{dst}, {wexpr}, {SLOT}")
            A(f"s_add_u32 s59, s{dst}, {KC-3*SLOT}")
            A(f"s_cmp_lt_u32 {wexpr}, 3")
            A(f"s_cselect_b32 s{dst}, s{dst}, s59")
        A(f"v_lshlrev_b32 v{T+1}, 4, v{VLANE}")
        A(f"v_add_u32 v{T+2}, s56, v{T+1}")
        A(f"v_add_u32 v{T+3}, s57, v{T+1}")
        A(f"v_lshlrev_b32 v{T+1}, 3, v{VLANE}")
        A(f"v_add_u32 v{T+4}, s56, v{T+1}")
        A(f"v_add_u32 v{T+5}, s57, v{T+1}")
        A("s_nop 7")
        k=0
        for j in range(4):
            for hh in range(2):
                r = O+16*j+8*(1-th)+4*hh
                A(f"ds_write_b128 v{T+2}, v[{r}:{r+3}] offset:{k*1024}")
                k+=1
        A(f"ds_write_b64 v{T+4}, v[{M}:{M+1}] offset:8192")
        if role=="K":
            A("s_cmp_lg_u32 s3, 0")
            A("s_cbranch_scc1 L_notk2")
            A("s_waitcnt vmcnt(0)")
            A(f"v_readfirstlane_b32 s58, v{VX+2}")
            A(f"v_mov_b32 v{VX}, {TKT}")
            A("s_nop 1")
            A(f"v_mov_b32 v{VX+1}, s58")
            A(f"ds_write_b32 v{VX}, v{VX+1}")
            A("L_notk2:")
        bar()
        for k in range(8):
            A(f"ds_read_b128 v[{KF+4*k}:{KF+4*k+3}], v{T+3} offset:{k*1024}")
        A(f"ds_read_b64 v[{VX+4}:{VX+5}], v{T+5} offset:8192")
        A(f"v_mov_b32 v{VX}, {TKT}")
        A(f"ds_read_b32 v{VX+1}, v{VX}")
        A("s_waitcnt lgkmcnt(0)")
        A(f"v_readfirstlane_b32 s60, v{VX+1}")
        A(f"v_max_f32 v{T}, v{M}, v{VX+4}")
        A(f"v_sub_f32 v{T+1}, v{M}, v{T}")
        A(f"v_sub_f32 v{T+2}, v{VX+4}, v{T}")
        A(f"v_mul_f32 v{T+1}, s40, v{T+1}")
        A(f"v_mul_f32 v{T+2}, s40, v{T+2}")
        A(f"v_exp_f32 v{T+1}, v{T+1}")
        A(f"v_exp_f32 v{T+2}, v{T+2}")
        A(f"v_mov_b32 v{M}, v{T}")
        A(f"v_mul_f32 v{LS}, v{LS}, v{T+1}")
        A(f"v_fmac_f32 v{LS}, v{VX+5}, v{T+2}")
        keep = [O+16*j+8*th+4*hh+c for j in range(4) for hh in range(2) for c in range(4)]
        for idx, r in enumerate(keep):
            A(f"v_mul_f32 v{r}, v{r}, v{T+1}")
            A(f"v_fmac_f32 v{r}, v{KF+idx}, v{T+2}")
        A("s_and_b32 s60, s60, 0xffff")
        A("s_cmp_eq_u32 s60, 3")
        A(f"s_cbranch_scc1 L_{role}_comb")
        A("s_mul_i32 s56, s36, 3"); A("s_add_u32 s56, s56, s60"); A("s_lshl_b32 s56, s56, 3"); A("s_add_u32 s56, s56, s3")
        A(f"s_mul_i32 s56, s56, {SLOT}")
        srd(28, 22, 56, SLOT)
        A(f"v_lshlrev_b32 v{T}, 4, v{VLANE}")
        A(f"v_add_u32 v{T+1}, 4096, v{T}")
        A(f"v_lshlrev_b32 v{T+2}, 3, v{VLANE}")
        A(f"v_add_u32 v{T+2}, 8192, v{T+2}")
        for k in range(8):
            r = keep[4*k]
            A(f"buffer_store_dwordx4 v[{r}:{r+3}], v{T+(k//4)}, s[28:31], 0 offen offset:{(k%4)*1024} sc1")
        A(f"buffer_store_dwordx2 v[{M}:{M+1}], v{T+2}, s[28:31], 0 offen sc1")
        A("s_waitcnt vmcnt(0)")
        A("s_barrier")
        if role=="K":
            A("s_cmp_lg_u32 s3, 0")
            A("s_cbranch_scc1 L_end")
            A("s_mov_b64 exec, 1")
            A("s_lshl_b32 s58, s36, 2")
            A(f"v_mov_b32 v{VX}, s58")
            A(f"v_mov_b32 v{VX+1}, 0x10000")
            A(f"global_atomic_add v{VX}, v{VX+1}, s[20:21]")
        A("s_endpgm")
        A(f"L_{role}_comb:")
        if role=="K":
            A("s_cmp_lg_u32 s3, 0")
            A("s_cbranch_scc1 L_nopoll")
            A("s_lshl_b32 s58, s36, 2")
            A(f"v_mov_b32 v{VX}, s58")
            A("L_poll:")
            A(f"global_load_dword v{VX+1}, v{VX}, s[20:21] sc1")
            A("s_waitcnt vmcnt(0)")
            A(f"v_readfirstlane_b32 s58, v{VX+1}")
            A("s_lshr_b32 s58, s58, 16")
            A("s_cmp_lg_u32 s58, 3")
            A("s_cbranch_scc1 L_poll")
            A("L_nopoll:")
        A("s_barrier")
        A("s_mul_i32 s56, s36, 24"); A("s_add_u32 s56, s56, s3")
        A(f"s_mul_i32 s56, s56, {SLOT}")
        srd(28, 22, 56, SLOT*17)
        A(f"v_lshlrev_b32 v{T}, 4, v{VLANE}")
        A(f"v_lshlrev_b32 v{T+2}, 3, v{VLANE}")
        dst = [RA, RB, KF]
        for t in range(3):
            A(f"v_add_u32 v{T+3}, {t*8*SLOT}, v{T}")
            A(f"v_add_u32 v{T+4}, {t*8*SLOT+4096}, v{T}")
            A(f"v_add_u32 v{T+5}, {t*8*SLOT+8192}, v{T+2}")
            A(f"buffer_load_dwordx2 v[{VX+2*t}:{VX+2*t+1}], v{T+5}, s[28:31], 0 offen sc1")
            for k in range(8):
                r = dst[t]+4*k
                A(f"buffer_load_dwordx4 v[{r}:{r+3}], v{T+3+(k//4)}, s[28:31], 0 offen offset:{(k%4)*1024} sc1")
        srd(32, 18, 43, 32768)
        A("s_lshl_b32 s56, s38, 13")
        A(f"v_lshlrev_b32 v{VTID}, 8, v{VL32}")
        A(f"v_lshl_add_u32 v{VTID}, v{VH}, 5, v{VTID}")
        A(f"v_add_u32 v{VTID}, s56, v{VTID}")
        A("s_waitcnt vmcnt(0)")
        A(f"v_max3_f32 v{T}, v{M}, v{VX}, v{VX+2}")
        A(f"v_max_f32 v{T}, v{T}, v{VX+4}")
        ms = [M, VX, VX+2, VX+4]
        for i, m in enumerate(ms):
            A(f"v_sub_f32 v{T+1+i}, v{m}, v{T}")
        for i in range(4):
            A(f"v_mul_f32 v{T+1+i}, s40, v{T+1+i}")
        for i in range(4):
            A(f"v_exp_f32 v{T+1+i}, v{T+1+i}")
        A("s_nop 0")
        A(f"v_mul_f32 v{LS}, v{LS}, v{T+1}")
        for i in range(3):
            A(f"v_fmac_f32 v{LS}, v{VX+2*i+1}, v{T+2+i}")
        A(f"v_rcp_f32 v{T}, v{LS}")
        A("s_nop 0")
        A(f"v_mul_f32 v{T}, 0x58000000, v{T}")
        for i in range(4):
            A(f"v_mul_f32 v{T+1+i}, v{T+1+i}, v{T}")
        for idx, r in enumerate(keep):
            A(f"v_mul_f32 v{r}, v{r}, v{T+1}")
            for t in range(3):
                A(f"v_fmac_f32 v{r}, v{dst[t]+idx}, v{T+2+t}")
        for a in range(2):
            for c in range(4):
                r = 8*th+4*a+c
                A(f"v_cvt_pk_bf16_f32 v{S+8*a+2*c}, v{O+r}, v{O+16+r}")
                A(f"v_cvt_pk_bf16_f32 v{S+8*a+2*c+1}, v{O+32+r}, v{O+48+r}")
            A(f"buffer_store_dwordx4 v[{S+8*a}:{S+8*a+3}], v{VTID}, s[32:35], 0 offen offset:{128*th+64*a}")
            A(f"buffer_store_dwordx4 v[{S+8*a+4}:{S+8*a+7}], v{VTID}, s[32:35], 0 offen offset:{128*th+64*a+16}")
        A("s_endpgm")
    A("L_end:"); A("s_endpgm")
    A('.section .rodata,"a"'); A(".p2align 6"); A(f".amdhsa_kernel {KNAME}")
    A("  .amdhsa_next_free_vgpr 256"); A("  .amdhsa_next_free_sgpr 64"); A("  .amdhsa_accum_offset 256")
    A("  .amdhsa_float_denorm_mode_32 3")
    A("  .amdhsa_group_segment_fixed_size 0"); A("  .amdhsa_kernarg_size 80"); A("  .amdhsa_user_sgpr_count 2")
    A("  .amdhsa_user_sgpr_kernarg_segment_ptr 1"); A("  .amdhsa_system_sgpr_workgroup_id_x 1"); A(".end_amdhsa_kernel")
    open(name, "w").write("\n".join(L) + "\n")

if __name__ == "__main__":
    gen(sys.argv[1] if len(sys.argv)>1 else "k1.s")
```

```python
import sys, struct, math
KNAME = "standalone__kv_cache_quant_int4_int2_kv_with_per_channel_or_per_token_scales__sampling_kernel"
HDR = open("standalone__kv_cache_quant_int4_int2_kv_with_per_channel_or_per_token_scales__sampling.s.ref").read().split("; Override")[0]

def f32bits(x): return struct.unpack("<I", struct.pack("<f", x))[0]

O=0; Q=64; S=96; KF=112; P=144; RA=152; RB=184
M=216; LT=217; LS2=218; NMC=220; MTH=221; ALPHA=222
T=224
VKRD=232; VVRD=233; VWR=234; VCST=235; VOFFA=236; VOFFB=237; VLANE=238; VTID=239; VL32=240; VH=241
VX=242
STAGE=33792; KBYTES=17408
SLOT=8704
C_SCALE = (128 ** -0.5) * math.log2(math.e) * 2.0**49
TH = 8.0 / C_SCALE

def gen(name, nt="nt", stamps=0, D=3, NC=35, DEEP=6, DEEPP=0, PK=1, LAZY=1, SHIFT=1):
    NPB = (128-NC)//3
    assert NC + 3*NPB == 128
    NROW = max(36, (NC+3)//4*4)
    QL=STAGE; KC=2*STAGE+1024; VC=KC+NROW*1024; LDS_TOTAL=KC+max(NROW*1536+1024, 8*SLOT)
    assert LDS_TOTAL <= 163840
    L=[]; A=L.append
    uid=[0]
    def stamp(i):
        if stamps: A(f"s_memrealtime s[{64+2*i}:{65+2*i}]")
    def stamp_out():
        if not stamps: return
        A("s_waitcnt lgkmcnt(0)")
        A("s_lshl_b32 s56, s2, 3"); A("s_add_u32 s56, s56, s3"); A("s_lshl_b32 s56, s56, 6"); A("s_add_u32 s56, s56, 0x4000000")
        A("s_add_u32 s28, s22, s56"); A("s_addc_u32 s29, s23, 0"); A("s_mov_b32 s30, 64"); A("s_mov_b32 s31, 0x20000")
        A("s_mov_b64 exec, 1")
        for i in range(8):
            A(f"v_mov_b32 v{i}, s{64+2*i}")
        A("v_mov_b32 v8, 0"); A("v_mov_b32 v9, s37")
        A("buffer_store_dwordx4 v[0:3], v8, s[28:31], 0 offen")
        A("buffer_store_dwordx4 v[4:7], v8, s[28:31], 0 offen offset:16")
        A("buffer_store_dword v9, v8, s[28:31], 0 offen offset:32")
    A(HDR.rstrip())
    A(f"; @launch grid=(256,1,1) block=(512,1,1) lds={LDS_TOTAL}")
    A('.amdgcn_target "amdgcn-amd-amdhsa--gfx950"')
    A(".text"); A(f".globl {KNAME}"); A(".p2align 8"); A(f".type {KNAME},@function"); A(f"{KNAME}:")
    A("s_cmp_ge_u32 s2, 256"); A("s_cbranch_scc1 L_end")
    for i in range(8): stamp(i)
    A("s_load_dwordx16 s[4:19], s[0:1], 0")
    A("s_load_dwordx4 s[20:23], s[0:1], 64")
    A(f"v_lshrrev_b32 v{T}, 6, v0")
    A(f"v_and_b32 v{VLANE}, 63, v0")
    A(f"v_mov_b32 v{VTID}, v0")
    A(f"v_readfirstlane_b32 s3, v{T}")
    A(f"v_and_b32 v{VL32}, 31, v0")
    A(f"v_bfe_u32 v{VH}, v0, 5, 1")
    A("s_lshr_b32 s36, s2, 2")
    A("s_lshr_b32 s37, s2, 3")
    A("s_add_u32 s37, s37, s2")
    A("s_and_b32 s37, s37, 3")
    A("s_and_b32 s38, s3, 3")
    A("s_lshr_b32 s39, s3, 2")
    A(f"s_mul_i32 s59, s37, {NPB}")
    A(f"s_add_u32 s59, s59, {NC-NPB}")
    A("s_cmp_eq_u32 s37, 0")
    A("s_cselect_b32 s59, 0, s59")
    A(f"s_movk_i32 s42, {NPB}")
    A(f"s_cselect_b32 s42, {NC}, s42")
    A(f"s_movk_i32 s61, {DEEPP}")
    A(f"s_cselect_b32 s61, {DEEP}, s61")
    A("s_lshl_b32 s58, s36, 22")
    A("s_lshl_b32 s60, s59, 15")
    A("s_add_u32 s58, s58, s60")
    A("s_lshl_b32 s60, s38, 13")
    A("s_movk_i32 s80, 272")
    A("s_mov_b64 vcc, -1")
    A("s_cmp_eq_u32 s39, 0")
    A("s_cbranch_scc0 L_v0")
    A(f"v_lshlrev_b32 v{VOFFA}, 4, v{VLANE}")
    A("s_branch L_v1")
    A("L_v0:")
    A(f"v_lshlrev_b32 v{VOFFA}, 4, v{VL32}")
    A(f"v_lshl_add_u32 v{VOFFA}, v{VH}, 11, v{VOFFA}")
    A("L_v1:")
    A(f"v_add_u32 v{VOFFA}, s60, v{VOFFA}")
    A(f"v_add_u32 v{VOFFB}, 4096, v{VOFFA}")
    A("s_waitcnt lgkmcnt(0)")
    A("s_cmp_eq_u32 s39, 0")
    A("s_cselect_b32 s24, s6, s8"); A("s_cselect_b32 s25, s7, s9")
    A("s_add_u32 s24, s24, s58"); A("s_addc_u32 s25, s25, 0")
    A("s_lshl_b32 s26, s42, 15"); A("s_mov_b32 s27, 0x20000")
    def srd(d, p, off, size):
        A(f"s_add_u32 s{d}, s{p}, s{off}"); A(f"s_addc_u32 s{d+1}, s{p+1}, 0")
        A(f"s_mov_b32 s{d+2}, {size}"); A(f"s_mov_b32 s{d+3}, 0x20000")
    def rawload(role, Rr, n, wait=True):
        step = 1024 if role=="K" else 512
        vo = VOFFA if n<4 else VOFFB
        if wait:
            uid[0]+=1
            A(f"s_cbranch_vccz L_w{uid[0]}")
            A(f"s_waitcnt vmcnt({D-1})")
            A(f"L_w{uid[0]}:")
        A(f"buffer_load_dwordx4 v[{Rr+4*n}:{Rr+4*n+3}], v{vo}, s[24:27], 0 offen offset:{(n%4)*step} {nt}")
        if n==3: A(f"v_add_u32 v{VOFFA}, 0x8000, v{VOFFA}")
        if n==7: A(f"v_add_u32 v{VOFFB}, 0x8000, v{VOFFB}")

    def kconst(b):
        for i in range(4):
            A(f"v_lshlrev_b32 v{T}, 16, v{b+i}")
            A(f"v_and_b32 v{T+1}, 0xffff0000, v{b+i}")
            A(f"v_lshlrev_b32 v{T+2}, 16, v{b+4+i}")
            A(f"v_and_b32 v{T+3}, 0xffff0000, v{b+4+i}")
            A(f"v_mul_f32 v{S+2*i}, 0x71800000, v{T}")
            A(f"v_mul_f32 v{S+2*i+1}, 0x71800000, v{T+1}")
            A(f"v_mul_f32 v{T+2}, v{T+2}, v{T}")
            A(f"v_mul_f32 v{T+3}, v{T+3}, v{T+1}")
            A(f"v_mul_f32 v{S+8+2*i}, 0xa7000000, v{T+2}")
            A(f"v_mul_f32 v{S+8+2*i+1}, 0xa7000000, v{T+3}")
    def kwrite(o):
        A(f"ds_write_b128 v{VX}, v[{S}:{S+3}] offset:{o}")
        A(f"ds_write_b128 v{VX}, v[{S+4}:{S+7}] offset:{o+16}")
        A(f"ds_write_b128 v{VX}, v[{S+8}:{S+11}] offset:{o+512}")
        A(f"ds_write_b128 v{VX}, v[{S+12}:{S+15}] offset:{o+528}")
    def vconst(b, o):
        for i in range(2):
            A(f"v_lshlrev_b32 v{T+4}, 16, v{b+8+i}")
            A(f"v_and_b32 v{T+1}, 0xffff0000, v{b+8+i}")
            A(f"v_lshlrev_b32 v{T+2}, 16, v{b+10+i}")
            A(f"v_and_b32 v{T+3}, 0xffff0000, v{b+10+i}")
            A(f"v_mul_f32 v{P+2*i}, 0x71800000, v{T+4}")
            A(f"v_mul_f32 v{P+2*i+1}, 0x71800000, v{T+1}")
            A(f"v_mul_f32 v{T+2}, v{T+2}, v{T+4}")
            A(f"v_mul_f32 v{T+3}, v{T+3}, v{T+1}")
            A(f"v_mul_f32 v{P+4+2*i}, 0xa7000000, v{T+2}")
            A(f"v_mul_f32 v{P+4+2*i+1}, 0xa7000000, v{T+3}")
        A(f"ds_write_b128 v{VX+1}, v[{P}:{P+3}] offset:{o}")
        A(f"ds_write_b128 v{VX+1}, v[{P+4}:{P+7}] offset:{o+16}")

    def cst_reads(role):
        if role=="K":
            A(f"ds_read_b128 v[{S}:{S+3}], v{VCST}")
            A(f"ds_read_b128 v[{S+4}:{S+7}], v{VCST} offset:512")
            A(f"v_add_u32 v{VCST}, 1024, v{VCST}")
            return 2
        else:
            A(f"ds_read_b128 v[{S}:{S+3}], v{VCST}")
            A(f"ds_read_b128 v[{S+4}:{S+7}], v{VCST} offset:16")
            A(f"ds_read_b128 v[{S+8}:{S+11}], v{VCST} offset:64")
            A(f"ds_read_b128 v[{S+12}:{S+15}], v{VCST} offset:80")
            A(f"v_add_u32 v{VCST}, 512, v{VCST}")
            return 4

    def produce(role, Rr, b, pts, vw):
        kb = b*STAGE; vb = kb + KBYTES
        A(f"s_waitcnt vmcnt({vw}) lgkmcnt(0)")
        for p in range(4):
            for (Rl, n) in pts.get(p, []): rawload(role, Rl, n)
            if role=="K":
                for n in (2*p, 2*p+1):
                    r = Rr+4*n
                    if PK:
                        A(f"v_pk_fma_f32 v[{r}:{r+1}], v[{r}:{r+1}], v[{S}:{S+1}], v[{S+4}:{S+5}]")
                        A(f"v_pk_fma_f32 v[{r+2}:{r+3}], v[{r+2}:{r+3}], v[{S+2}:{S+3}], v[{S+6}:{S+7}]")
                    else:
                        for j in range(4):
                            A(f"v_fma_f32 v{r+j}, v{r+j}, v{S+j}, v{S+4+j}")
                    A(f"v_cvt_pk_bf16_f32 v{KF+2*n}, v{r}, v{r+1}")
                    A(f"v_cvt_pk_bf16_f32 v{KF+2*n+1}, v{r+2}, v{r+3}")
                    A(f"ds_write_b64 v{VWR}, v[{KF+2*n}:{KF+2*n+1}] offset:{kb+n*544}")
            else:
                for i in (2*p, 2*p+1):
                    r = Rr+4*i
                    cs = S + (i//4)*8 + i%4; cc = cs+4
                    if PK:
                        x = cs & 1; c0 = cs & ~1; c1 = cc & ~1
                        for jj in (0, 2):
                            A(f"v_pk_fma_f32 v[{r+jj}:{r+jj+1}], v[{r+jj}:{r+jj+1}], v[{c0}:{c0+1}], v[{c1}:{c1+1}] op_sel:[0,{x},{x}] op_sel_hi:[1,{x},{x}]")
                    else:
                        for j in range(4):
                            A(f"v_fma_f32 v{r+j}, v{r+j}, v{cs}, v{cc}")
                for j in range(4):
                    A(f"v_cvt_pk_bf16_f32 v{KF+4*j+p}, v{Rr+8*p+j}, v{Rr+8*p+4+j}")
        if role=="V":
            for j in range(4):
                A(f"ds_write_b128 v{VWR}, v[{KF+4*j}:{KF+4*j+3}] offset:{vb+j*1024}")
        for (Rl, n) in pts.get(4, []): rawload(role, Rl, n)

    def consume(role, b, pts):
        kb = b*STAGE; vb = kb + KBYTES
        def pt(k):
            for (Rl, n) in pts.get(k, []): rawload(role, Rl, n)
        for s in range(8):
            A(f"ds_read_b128 v[{KF+4*s}:{KF+4*s+3}], v{VKRD} offset:{kb+s*32}")
        pt(0)
        for s in range(8):
            A(f"s_waitcnt lgkmcnt({7-s})")
            c = "0" if s==0 else f"v[{S}:{S+15}]"
            A(f"v_mfma_f32_32x32x16_bf16 v[{S}:{S+15}], v[{KF+4*s}:{KF+4*s+3}], v[{Q+4*s}:{Q+4*s+3}], {c}")
        for x in range(8):
            A(f"ds_read_b128 v[{KF+4*x}:{KF+4*x+3}], v{VVRD} offset:{vb+x*1024}")
        pt(1)
        A("s_nop 3")
        A(f"v_max3_f32 v{T}, v{S}, v{S+1}, v{S+2}")
        A(f"v_max3_f32 v{T+1}, v{S+3}, v{S+4}, v{S+5}")
        A(f"v_max3_f32 v{T+2}, v{S+6}, v{S+7}, v{S+8}")
        A(f"v_max3_f32 v{T+3}, v{S+9}, v{S+10}, v{S+11}")
        A(f"v_max3_f32 v{T}, v{T}, v{S+12}, v{S+13}")
        A(f"v_max3_f32 v{T+1}, v{T+1}, v{S+14}, v{S+15}")
        A(f"v_max3_f32 v{T}, v{T}, v{T+2}, v{T+3}")
        uid[0]+=1; u=uid[0]
        if LAZY:
            A(f"v_max_f32 v{T}, v{T}, v{T+1}")
            A(f"v_cmp_gt_f32 s[82:83], v{T}, v{MTH}")
            A("s_nop 0")
            A("s_cmp_eq_u64 s[82:83], 0")
            A(f"s_cbranch_scc1 L_nr{u}")
            A(f"v_max_f32 v{T}, v{T}, v{M}")
        else:
            A(f"v_max3_f32 v{T}, v{T}, v{T+1}, v{M}")
        A(f"v_mov_b32 v{T+1}, v{T}")
        A("s_nop 1")
        A(f"v_permlane32_swap_b32 v{T}, v{T+1}")
        A("s_nop 0")
        A(f"v_max_f32 v{T}, v{T}, v{T+1}")
        A(f"v_sub_f32 v{T+2}, v{M}, v{T}")
        A(f"v_mul_f32 v{T+2}, s40, v{T+2}")
        A(f"v_mul_f32 v{NMC}, s44, v{T}")
        A(f"v_exp_f32 v{ALPHA}, v{T+2}")
        A(f"v_mov_b32 v{M}, v{T}")
        A(f"v_add_f32 v{MTH}, s45, v{T}")
        A(f"v_pk_mul_f32 v[{LS2}:{LS2+1}], v[{LS2}:{LS2+1}], v[{ALPHA}:{ALPHA+1}] op_sel_hi:[1,0]")
        for i in range(0, 64, 2):
            A(f"v_pk_mul_f32 v[{O+i}:{O+i+1}], v[{O+i}:{O+i+1}], v[{ALPHA}:{ALPHA+1}] op_sel_hi:[1,0]")
        if LAZY: A(f"L_nr{u}:")
        if PK:
            for r in range(0, 16, 2):
                A(f"v_pk_fma_f32 v[{S+r}:{S+r+1}], v[{S+r}:{S+r+1}], s[40:41], v[{NMC}:{NMC+1}] op_sel_hi:[1,1,0]")
        else:
            for r in range(16):
                A(f"v_fma_f32 v{S+r}, v{S+r}, s40, v{NMC}")
        for r in range(16):
            A(f"v_exp_f32 v{S+r}, v{S+r}")
        pt(2)
        for k in range(8):
            A(f"v_cvt_pk_bf16_f32 v{P+k}, v{S+2*k}, v{S+2*k+1}")
        for i in range(4):
            A(f"v_pk_add_f32 v[{T+2*i}:{T+2*i+1}], v[{S+4*i}:{S+4*i+1}], v[{S+4*i+2}:{S+4*i+3}]")
        A(f"v_pk_add_f32 v[{T}:{T+1}], v[{T}:{T+1}], v[{T+2}:{T+3}]")
        A(f"v_pk_add_f32 v[{T+4}:{T+5}], v[{T+4}:{T+5}], v[{T+6}:{T+7}]")
        nc = cst_reads(role)
        pt(3)
        A(f"s_waitcnt lgkmcnt({nc})")
        for s in range(2):
            for j in range(4):
                x = s*4+j
                A(f"v_mfma_f32_32x32x16_bf16 v[{O+16*j}:{O+16*j+15}], v[{KF+4*x}:{KF+4*x+3}], v[{P+4*s}:{P+4*s+3}], v[{O+16*j}:{O+16*j+15}]")
            if s==0:
                A(f"v_pk_add_f32 v[{T}:{T+1}], v[{T}:{T+1}], v[{T+4}:{T+5}]")
                A(f"v_pk_add_f32 v[{LS2}:{LS2+1}], v[{LS2}:{LS2+1}], v[{T}:{T+1}]")
        pt(4)

    def bar():
        A("s_waitcnt lgkmcnt(0)"); A("s_barrier")
    def setdeep():
        A("s_cmp_gt_u32 s42, s61")
        A("s_cselect_b64 vcc, -1, 0")

    A("s_cmp_eq_u32 s39, 0")
    A("s_cbranch_scc0 L_V_entry")
    for role in ("K","V"):
        th = 0 if role=="K" else 1
        shifted = (role=="V" and SHIFT)
        A(f"L_{role}_entry:")
        for n in range(8): rawload(role, RA, n, False)
        A("s_lshl_b32 s43, s36, 15")
        A("s_lshl_b32 s57, s36, 14")
        srd(28, 10, 43, 32768)
        srd(32, 12, 43, 32768)
        srd(84, 14, 57, 16384)
        srd(48, 16, 57, 16384)
        srd(52, 4, 43, 32768)
        A("s_lshl_b32 s60, s59, 8")
        A(f"v_lshlrev_b32 v{T+4}, 4, v{VTID}")
        A(f"v_add_u32 v{T+4}, s60, v{T+4}")
        A("s_lshl_b32 s60, s59, 7")
        A(f"v_lshlrev_b32 v{T+5}, 3, v{VTID}")
        A(f"v_add_u32 v{T+5}, s60, v{T+5}")
        b = KF
        A(f"buffer_load_dwordx4 v[{b}:{b+3}], v{T+4}, s[28:31], 0 offen {nt}")
        A(f"buffer_load_dwordx4 v[{b+4}:{b+7}], v{T+4}, s[32:35], 0 offen {nt}")
        A(f"buffer_load_dwordx2 v[{b+8}:{b+9}], v{T+5}, s[84:87], 0 offen {nt}")
        A(f"buffer_load_dwordx2 v[{b+10}:{b+11}], v{T+5}, s[48:51], 0 offen {nt}")
        if role=="K":
            A(f"s_cmp_ge_u32 s3, {(NROW-32)//4}")
            A("s_cbranch_scc1 L_skip_l1")
            A(f"v_add_u32 v{T+4}, 8192, v{T+4}")
            A(f"v_add_u32 v{T+5}, 4096, v{T+5}")
            b = KF+12
            A(f"buffer_load_dwordx4 v[{b}:{b+3}], v{T+4}, s[28:31], 0 offen {nt}")
            A(f"buffer_load_dwordx4 v[{b+4}:{b+7}], v{T+4}, s[32:35], 0 offen {nt}")
            A(f"buffer_load_dwordx2 v[{b+8}:{b+9}], v{T+5}, s[84:87], 0 offen {nt}")
            A(f"buffer_load_dwordx2 v[{b+10}:{b+11}], v{T+5}, s[48:51], 0 offen {nt}")
            A("L_skip_l1:")
        A(f"v_lshlrev_b32 v{T+2}, 4, v{VLANE}")
        A("s_lshl_b32 s60, s3, 12")
        A(f"v_add_u32 v{T+2}, s60, v{T+2}")
        for n in range(4):
            A(f"buffer_load_dwordx4 v[{Q+4*n}:{Q+4*n+3}], v{T+2}, s[52:55], 0 offen offset:{n*1024} {nt}")
        NB0 = 4
        for n in range(NB0): rawload(role, RB, n, False)
        stamp(4)
        A(f"s_mov_b32 s40, {f32bits(C_SCALE):#x}")
        A(f"s_mov_b32 s41, {f32bits(C_SCALE):#x}")
        A(f"s_mov_b32 s44, {f32bits(-C_SCALE):#x}")
        A(f"s_mov_b32 s45, {f32bits(TH):#x}")
        A("s_lshl_b32 s56, s36, 2")
        A("s_add_u32 s62, s20, s56"); A("s_addc_u32 s63, s21, 0")
        A("s_lshl_b32 s60, s39, 5")
        A(f"v_add_u32 v{T+3}, s60, v{VL32}")
        A(f"v_mul_lo_u32 v{VKRD}, v{T+3}, s80")
        A(f"v_lshl_add_u32 v{VKRD}, v{VH}, 4, v{VKRD}")
        A("s_lshl_b32 s60, s39, 13")
        A(f"v_lshlrev_b32 v{VVRD}, 4, v{VLANE}")
        A(f"v_add_u32 v{VVRD}, s60, v{VVRD}")
        if role=="K":
            A("s_lshl_b32 s60, s38, 4")
            A(f"v_add_u32 v{T+3}, s60, v{VH}")
            A(f"v_mul_lo_u32 v{VWR}, v{T+3}, s80")
            A(f"v_lshl_add_u32 v{VWR}, v{VL32}, 3, v{VWR}")
            A(f"v_lshlrev_b32 v{VCST}, 4, v{VL32}")
            A(f"v_add_u32 v{VCST}, {KC}, v{VCST}")
        else:
            A("s_lshl_b32 s60, s38, 12")
            A(f"v_lshlrev_b32 v{VWR}, 4, v{VLANE}")
            A(f"v_add_u32 v{VWR}, s60, v{VWR}")
            A("s_lshl_b32 s60, s38, 7")
            A(f"s_add_u32 s60, s60, {VC}")
            A(f"v_lshlrev_b32 v{VCST}, 5, v{VH}")
            A(f"v_add_u32 v{VCST}, s60, v{VCST}")
        for i in range(64): A(f"v_mov_b32 v{O+i}, 0")
        A(f"v_mov_b32 v{M}, {f32bits(-3.0e38):#x}")
        A(f"v_mov_b32 v{MTH}, {f32bits(-3.0e38):#x}")
        A(f"v_mov_b32 v{NMC}, 0")
        A(f"v_mov_b32 v{LS2}, 0"); A(f"v_mov_b32 v{LS2+1}, 0")
        A(f"v_lshrrev_b32 v{T}, 4, v{VTID}")
        A(f"v_and_b32 v{T+1}, 15, v{VTID}")
        A(f"v_lshlrev_b32 v{VX}, 10, v{T}")
        A(f"v_lshl_add_u32 v{VX}, v{T+1}, 5, v{VX}")
        A(f"v_add_u32 v{VX}, {KC}, v{VX}")
        A(f"v_lshlrev_b32 v{VX+1}, 5, v{VTID}")
        A(f"v_add_u32 v{VX+1}, {VC}, v{VX+1}")
        A(f"v_lshrrev_b32 v{T}, 4, v{VLANE}")
        A("s_lshl_b32 s60, s3, 4")
        A(f"v_add_u32 v{T}, s60, v{T}")
        A(f"v_mul_lo_u32 v{VX+2}, v{T}, s80")
        A(f"v_lshl_add_u32 v{VX+2}, v{T+1}, 4, v{VX+2}")
        A(f"v_add_u32 v{VX+2}, {QL}, v{VX+2}")
        A("s_lshl_b32 s60, s38, 5")
        A(f"v_add_u32 v{T}, s60, v{VL32}")
        A(f"v_mul_lo_u32 v{VX+3}, v{T}, s80")
        A(f"v_lshl_add_u32 v{VX+3}, v{VH}, 4, v{VX+3}")
        A(f"v_add_u32 v{VX+3}, {QL}, v{VX+3}")
        A(f"s_waitcnt vmcnt({NB0})")
        stamp(5)
        kconst(KF); kwrite(0); rawload(role, RB, 4); vconst(KF, 0)
        for n in range(4):
            A(f"ds_write_b128 v{VX+2}, v[{Q+4*n}:{Q+4*n+3}] offset:{n*4*272}")
        if role=="K":
            A(f"s_cmp_ge_u32 s3, {(NROW-32)//4}")
            A("s_cbranch_scc1 L_skip_p1")
            kconst(KF+12); kwrite(32768); vconst(KF+12, 16384)
            A("L_skip_p1:")
        rawload(role, RB, 5)
        bar()
        stamp(1)
        for s in range(8):
            A(f"ds_read_b128 v[{Q+4*s}:{Q+4*s+3}], v{VX+3} offset:{s*32}")
        cst_reads(role)
        produce(role, RA, 0, {1:[(RB,6)], 3:[(RB,7)]}, 6)
        if shifted:
            cst_reads(role)
            for n in range(4): rawload(role, RA, n)
        bar()
        stamp(2)
        A(f"L_{role}_loop:")
        for par in range(2):
            Rc = (RA, RB)[par]
            Rn = (RB, RA)[par]
            setdeep()
            if not shifted:
                consume(role, par, {0:[(Rc,0)], 1:[(Rc,1)], 2:[(Rc,2)], 3:[(Rc,3)], 4:[(Rc,4)]})
                A("s_sub_u32 s42, s42, 1")
                A("s_cmp_eq_u32 s42, 0")
                A(f"s_cbranch_scc1 L_{role}_epi")
                produce(role, Rn, 1-par, {1:[(Rc,5)], 3:[(Rc,6)], 4:[(Rc,7)]}, 5)
                bar()
            else:
                A("s_cmp_eq_u32 s42, 1")
                A(f"s_cbranch_scc1 L_{role}_last{par}")
                produce(role, Rn, 1-par, {0:[(Rc,4)], 2:[(Rc,5)], 4:[(Rc,6)]}, 4)
                consume(role, par, {0:[(Rc,7)], 1:[(Rn,0)], 2:[(Rn,1)], 3:[(Rn,2)], 4:[(Rn,3)]})
                A("s_sub_u32 s42, s42, 1")
                bar()
        A(f"s_branch L_{role}_loop")
        if shifted:
            for par in range(2):
                A(f"L_{role}_last{par}:")
                A("s_waitcnt lgkmcnt(0)")
                consume(role, par, {})
                if par==0: A(f"s_branch L_{role}_epi")
        A(f"L_{role}_epi:")
        A("s_waitcnt vmcnt(0) lgkmcnt(0)")
        stamp(3)
        A(f"v_add_f32 v{LT}, v{LS2}, v{LS2+1}")
        A(f"v_mov_b32 v{T}, v{LT}")
        A("s_nop 1")
        A(f"v_permlane32_swap_b32 v{LT}, v{T}")
        A("s_nop 0")
        A(f"v_add_f32 v{LT}, v{LT}, v{T}")
        A(f"s_mul_i32 s56, s3, {SLOT}"); A(f"s_add_u32 s56, s56, {KC}")
        A("s_xor_b32 s58, s3, 4")
        A(f"s_mul_i32 s57, s58, {SLOT}"); A(f"s_add_u32 s57, s57, {KC}")
        A(f"v_lshlrev_b32 v{T+1}, 4, v{VLANE}")
        A(f"v_add_u32 v{T+2}, s56, v{T+1}")
        A(f"v_add_u32 v{T+3}, s57, v{T+1}")
        A(f"v_lshlrev_b32 v{T+1}, 3, v{VLANE}")
        A(f"v_add_u32 v{T+4}, s56, v{T+1}")
        A(f"v_add_u32 v{T+5}, s57, v{T+1}")
        A("s_nop 7")
        k=0
        for j in range(4):
            for hh in range(2):
                r = O+16*j+8*(1-th)+4*hh
                A(f"ds_write_b128 v{T+2}, v[{r}:{r+3}] offset:{k*1024}")
                k+=1
        A(f"ds_write_b64 v{T+4}, v[{M}:{M+1}] offset:8192")
        A("s_waitcnt lgkmcnt(0)"); A("s_barrier")
        for k in range(8):
            A(f"ds_read_b128 v[{KF+4*k}:{KF+4*k+3}], v{T+3} offset:{k*1024}")
        A(f"ds_read_b64 v[{VX+4}:{VX+5}], v{T+5} offset:8192")
        A("s_waitcnt lgkmcnt(0)")
        A(f"v_max_f32 v{T}, v{M}, v{VX+4}")
        A(f"v_sub_f32 v{T+1}, v{M}, v{T}")
        A(f"v_sub_f32 v{T+2}, v{VX+4}, v{T}")
        A(f"v_mul_f32 v{T+1}, s40, v{T+1}")
        A(f"v_mul_f32 v{T+2}, s40, v{T+2}")
        A(f"v_exp_f32 v{T+1}, v{T+1}")
        A(f"v_exp_f32 v{T+2}, v{T+2}")
        A(f"v_mov_b32 v{M}, v{T}")
        A(f"v_mul_f32 v{LT}, v{LT}, v{T+1}")
        A(f"v_fmac_f32 v{LT}, v{VX+5}, v{T+2}")
        keep = [O+16*j+8*th+4*hh+c for j in range(4) for hh in range(2) for c in range(4)]
        for idx, r in enumerate(keep):
            A(f"v_mul_f32 v{r}, v{r}, v{T+1}")
            A(f"v_fmac_f32 v{r}, v{KF+idx}, v{T+2}")
        A("s_cmp_eq_u32 s37, 0")
        A(f"s_cbranch_scc1 L_{role}_comb")
        A("s_mul_i32 s56, s36, 3"); A("s_add_u32 s56, s56, s37"); A("s_sub_u32 s56, s56, 1"); A("s_lshl_b32 s56, s56, 3"); A("s_add_u32 s56, s56, s3")
        A(f"s_mul_i32 s56, s56, {SLOT}")
        srd(28, 22, 56, SLOT)
        A(f"v_lshlrev_b32 v{T}, 4, v{VLANE}")
        A(f"v_add_u32 v{T+1}, 4096, v{T}")
        A(f"v_lshlrev_b32 v{T+2}, 3, v{VLANE}")
        A(f"v_add_u32 v{T+2}, 8192, v{T+2}")
        for k in range(8):
            r = keep[4*k]
            A(f"buffer_store_dwordx4 v[{r}:{r+3}], v{T+(k//4)}, s[28:31], 0 offen offset:{(k%4)*1024} sc1")
        A(f"buffer_store_dwordx2 v[{M}:{M+1}], v{T+2}, s[28:31], 0 offen sc1")
        A("s_waitcnt vmcnt(0)")
        A("s_barrier")
        stamp(6)
        stamp_out()
        if role=="K":
            A("s_cmp_lg_u32 s3, 0")
            A("s_cbranch_scc1 L_end")
            A("s_mov_b64 exec, 1")
            A(f"v_mov_b32 v{VX}, 0")
            A(f"v_mov_b32 v{VX+1}, 1")
            A(f"global_atomic_add v{VX}, v{VX+1}, s[62:63]")
        A("s_endpgm")
        A(f"L_{role}_comb:")
        if role=="K":
            A("s_cmp_lg_u32 s3, 0")
            A("s_cbranch_scc1 L_nopoll")
            A(f"v_mov_b32 v{VX}, 0")
            A("L_poll:")
            A(f"global_load_dword v{VX+1}, v{VX}, s[62:63] sc1")
            A("s_waitcnt vmcnt(0)")
            A(f"v_readfirstlane_b32 s58, v{VX+1}")
            A("s_cmp_lg_u32 s58, 3")
            A("s_cbranch_scc1 L_poll")
            A("L_nopoll:")
        A("s_barrier")
        stamp(6)
        A("s_mul_i32 s56, s36, 24"); A("s_add_u32 s56, s56, s3")
        A(f"s_mul_i32 s56, s56, {SLOT}")
        srd(28, 22, 56, SLOT*17)
        A(f"v_lshlrev_b32 v{T}, 4, v{VLANE}")
        A(f"v_lshlrev_b32 v{T+2}, 3, v{VLANE}")
        dst = [RA, RB, KF]
        for t in range(3):
            A(f"v_add_u32 v{T+3}, {t*8*SLOT}, v{T}")
            A(f"v_add_u32 v{T+4}, {t*8*SLOT+4096}, v{T}")
            A(f"v_add_u32 v{T+5}, {t*8*SLOT+8192}, v{T+2}")
            A(f"buffer_load_dwordx2 v[{VX+2*t}:{VX+2*t+1}], v{T+5}, s[28:31], 0 offen sc1")
            for k in range(8):
                r = dst[t]+4*k
                A(f"buffer_load_dwordx4 v[{r}:{r+3}], v{T+3+(k//4)}, s[28:31], 0 offen offset:{(k%4)*1024} sc1")
        srd(32, 18, 43, 32768)
        A("s_lshl_b32 s56, s38, 13")
        A(f"v_lshlrev_b32 v{VTID}, 8, v{VL32}")
        A(f"v_lshl_add_u32 v{VTID}, v{VH}, 5, v{VTID}")
        A(f"v_add_u32 v{VTID}, s56, v{VTID}")
        A("s_waitcnt vmcnt(0)")
        A(f"v_max3_f32 v{T}, v{M}, v{VX}, v{VX+2}")
        A(f"v_max_f32 v{T}, v{T}, v{VX+4}")
        ms = [M, VX, VX+2, VX+4]
        for i, m in enumerate(ms):
            A(f"v_sub_f32 v{T+1+i}, v{m}, v{T}")
        for i in range(4):
            A(f"v_mul_f32 v{T+1+i}, s40, v{T+1+i}")
        for i in range(4):
            A(f"v_exp_f32 v{T+1+i}, v{T+1+i}")
        A("s_nop 0")
        A(f"v_mul_f32 v{LT}, v{LT}, v{T+1}")
        for i in range(3):
            A(f"v_fmac_f32 v{LT}, v{VX+2*i+1}, v{T+2+i}")
        A(f"v_rcp_f32 v{T}, v{LT}")
        A("s_nop 0")
        A(f"v_mul_f32 v{T}, 0x58000000, v{T}")
        for i in range(4):
            A(f"v_mul_f32 v{T+1+i}, v{T+1+i}, v{T}")
        for idx, r in enumerate(keep):
            A(f"v_mul_f32 v{r}, v{r}, v{T+1}")
            for t in range(3):
                A(f"v_fmac_f32 v{r}, v{dst[t]+idx}, v{T+2+t}")
        for a in range(2):
            for c in range(4):
                r = 8*th+4*a+c
                A(f"v_cvt_pk_bf16_f32 v{S+8*a+2*c}, v{O+r}, v{O+16+r}")
                A(f"v_cvt_pk_bf16_f32 v{S+8*a+2*c+1}, v{O+32+r}, v{O+48+r}")
            A(f"buffer_store_dwordx4 v[{S+8*a}:{S+8*a+3}], v{VTID}, s[32:35], 0 offen offset:{128*th+64*a}")
            A(f"buffer_store_dwordx4 v[{S+8*a+4}:{S+8*a+7}], v{VTID}, s[32:35], 0 offen offset:{128*th+64*a+16}")
        if stamps:
            A("s_waitcnt vmcnt(0)")
            stamp(7)
            stamp_out()
        A("s_endpgm")
    A("L_end:"); A("s_endpgm")
    A('.section .rodata,"a"'); A(".p2align 6"); A(f".amdhsa_kernel {KNAME}")
    A("  .amdhsa_next_free_vgpr 256"); A("  .amdhsa_next_free_sgpr 96"); A("  .amdhsa_accum_offset 256")
    A("  .amdhsa_float_denorm_mode_32 3")
    A("  .amdhsa_group_segment_fixed_size 0"); A("  .amdhsa_kernarg_size 80"); A("  .amdhsa_user_sgpr_count 2")
    A("  .amdhsa_user_sgpr_kernarg_segment_ptr 1"); A("  .amdhsa_system_sgpr_workgroup_id_x 1"); A(".end_amdhsa_kernel")
    open(name, "w").write("\n".join(L) + "\n")

if __name__ == "__main__":
    kw = {}
    for a in sys.argv[2:]:
        if a == "--stamps": kw["stamps"] = 1
        elif a.startswith("--"):
            k, v = a[2:].split("=")
            kw[k] = tuple(int(x) for x in v.split(",")) if "," in v else int(v)
    gen(sys.argv[1], **kw)
```

```python
import sys, struct, math
KNAME = "standalone__kv_cache_quant_int4_int2_kv_with_per_channel_or_per_token_scales__sampling_kernel"
HDR = open("standalone__kv_cache_quant_int4_int2_kv_with_per_channel_or_per_token_scales__sampling.s.ref").read().split("; Override")[0]

def f32bits(x): return struct.unpack("<I", struct.pack("<f", x))[0]

O=0; Q=64; S=96; KF=112; P=144; RA=152; RB=184
M=216; LT=217; LS2=218; NMC=220; MTH=221; ALPHA=222
T=224
VKRD=232; VVRD=233; VWR=234; VCST=235; VOFFA=236; VOFFB=237; VLANE=238; VTID=239; VL32=240; VH=241
VX=242
STAGE=33792; KBYTES=17408
SLOT=8704
C_SCALE = (128 ** -0.5) * math.log2(math.e) * 2.0**49
TH = 8.0 / C_SCALE

def gen(name, nt="nt", stamps=0, D=3, NC=35, DEEP=6, DEEPP=0, PK=1, LAZY=1, SHIFT=1, PF=0, PFAT=5):
    NPB = (128-NC)//3
    assert NC + 3*NPB == 128
    NROW = max(36, (NC+3)//4*4)
    QL=STAGE; KC=2*STAGE+1024; VC=KC+NROW*1024; LDS_TOTAL=KC+max(NROW*1536+1024, 8*SLOT)
    assert LDS_TOTAL <= 163840
    L=[]; A=L.append
    uid=[0]
    def stamp(i):
        if stamps: A(f"s_memrealtime s[{64+2*i}:{65+2*i}]")
    def stamp_out():
        if not stamps: return
        A("s_waitcnt lgkmcnt(0)")
        A("s_lshl_b32 s56, s2, 3"); A("s_add_u32 s56, s56, s3"); A("s_lshl_b32 s56, s56, 6"); A("s_add_u32 s56, s56, 0x4000000")
        A("s_add_u32 s28, s22, s56"); A("s_addc_u32 s29, s23, 0"); A("s_mov_b32 s30, 64"); A("s_mov_b32 s31, 0x20000")
        A("s_mov_b64 exec, 1")
        for i in range(8):
            A(f"v_mov_b32 v{i}, s{64+2*i}")
        A("v_mov_b32 v8, 0"); A("v_mov_b32 v9, s37")
        A("buffer_store_dwordx4 v[0:3], v8, s[28:31], 0 offen")
        A("buffer_store_dwordx4 v[4:7], v8, s[28:31], 0 offen offset:16")
        A("buffer_store_dword v9, v8, s[28:31], 0 offen offset:32")
    A(HDR.rstrip())
    A(f"; @launch grid=(256,1,1) block=(512,1,1) lds={LDS_TOTAL}")
    A('.amdgcn_target "amdgcn-amd-amdhsa--gfx950"')
    A(".text"); A(f".globl {KNAME}"); A(".p2align 8"); A(f".type {KNAME},@function"); A(f"{KNAME}:")
    A("s_cmp_ge_u32 s2, 256"); A("s_cbranch_scc1 L_end")
    for i in range(8): stamp(i)
    A("s_load_dwordx16 s[4:19], s[0:1], 0")
    A("s_load_dwordx4 s[20:23], s[0:1], 64")
    A(f"v_lshrrev_b32 v{T}, 6, v0")
    A(f"v_and_b32 v{VLANE}, 63, v0")
    A(f"v_mov_b32 v{VTID}, v0")
    A(f"v_readfirstlane_b32 s3, v{T}")
    A(f"v_and_b32 v{VL32}, 31, v0")
    A(f"v_bfe_u32 v{VH}, v0, 5, 1")
    def codepf(dst=VX):
        A(f"v_lshlrev_b32 v{VX+4}, 4, v{VTID}")
        for i in range(3):
            A(f"v_min_u32 v{VX+5}, s90, v{VX+4}")
            A(f"global_load_dwordx4 v[{dst}:{dst+3}], v{VX+5}, s[88:89]")
            if i < 2: A(f"v_add_u32 v{VX+4}, 8192, v{VX+4}")
    if PF:
        A("s_getpc_b64 s[88:89]")
        A("L_pc:")
        A(f"s_sub_u32 s88, s88, L_pc-{KNAME}")
        A("s_subb_u32 s89, s89, 0")
        A(f"s_mov_b32 s90, (L_end-{KNAME}-16)&0xfffffff0")
        if PF & 1: codepf(S)
    A("s_lshr_b32 s36, s2, 2")
    A("s_lshr_b32 s37, s2, 3")
    A("s_add_u32 s37, s37, s2")
    A("s_and_b32 s37, s37, 3")
    A("s_and_b32 s38, s3, 3")
    A("s_lshr_b32 s39, s3, 2")
    A(f"s_mul_i32 s59, s37, {NPB}")
    A(f"s_add_u32 s59, s59, {NC-NPB}")
    A("s_cmp_eq_u32 s37, 0")
    A("s_cselect_b32 s59, 0, s59")
    A(f"s_movk_i32 s42, {NPB}")
    A(f"s_cselect_b32 s42, {NC}, s42")
    A(f"s_movk_i32 s61, {DEEPP}")
    A(f"s_cselect_b32 s61, {DEEP}, s61")
    A("s_lshl_b32 s58, s36, 22")
    A("s_lshl_b32 s60, s59, 15")
    A("s_add_u32 s58, s58, s60")
    A("s_lshl_b32 s60, s38, 13")
    A("s_movk_i32 s80, 272")
    A("s_mov_b64 vcc, -1")
    A("s_cmp_eq_u32 s39, 0")
    A("s_cbranch_scc0 L_v0")
    A(f"v_lshlrev_b32 v{VOFFA}, 4, v{VLANE}")
    A("s_branch L_v1")
    A("L_v0:")
    A(f"v_lshlrev_b32 v{VOFFA}, 4, v{VL32}")
    A(f"v_lshl_add_u32 v{VOFFA}, v{VH}, 11, v{VOFFA}")
    A("L_v1:")
    A(f"v_add_u32 v{VOFFA}, s60, v{VOFFA}")
    A(f"v_add_u32 v{VOFFB}, 4096, v{VOFFA}")
    A("s_waitcnt lgkmcnt(0)")
    A("s_cmp_eq_u32 s39, 0")
    A("s_cselect_b32 s24, s6, s8"); A("s_cselect_b32 s25, s7, s9")
    A("s_add_u32 s24, s24, s58"); A("s_addc_u32 s25, s25, 0")
    A("s_lshl_b32 s26, s42, 15"); A("s_mov_b32 s27, 0x20000")
    def srd(d, p, off, size):
        A(f"s_add_u32 s{d}, s{p}, s{off}"); A(f"s_addc_u32 s{d+1}, s{p+1}, 0")
        A(f"s_mov_b32 s{d+2}, {size}"); A(f"s_mov_b32 s{d+3}, 0x20000")
    def rawload(role, Rr, n, wait=True):
        step = 1024 if role=="K" else 512
        vo = VOFFA if n<4 else VOFFB
        if wait:
            uid[0]+=1
            A(f"s_cbranch_vccz L_w{uid[0]}")
            A(f"s_waitcnt vmcnt({D-1})")
            A(f"L_w{uid[0]}:")
        A(f"buffer_load_dwordx4 v[{Rr+4*n}:{Rr+4*n+3}], v{vo}, s[24:27], 0 offen offset:{(n%4)*step} {nt}")
        if n==3: A(f"v_add_u32 v{VOFFA}, 0x8000, v{VOFFA}")
        if n==7: A(f"v_add_u32 v{VOFFB}, 0x8000, v{VOFFB}")

    def kconst(b):
        for i in range(4):
            A(f"v_lshlrev_b32 v{T}, 16, v{b+i}")
            A(f"v_and_b32 v{T+1}, 0xffff0000, v{b+i}")
            A(f"v_lshlrev_b32 v{T+2}, 16, v{b+4+i}")
            A(f"v_and_b32 v{T+3}, 0xffff0000, v{b+4+i}")
            A(f"v_mul_f32 v{S+2*i}, 0x71800000, v{T}")
            A(f"v_mul_f32 v{S+2*i+1}, 0x71800000, v{T+1}")
            A(f"v_mul_f32 v{T+2}, v{T+2}, v{T}")
            A(f"v_mul_f32 v{T+3}, v{T+3}, v{T+1}")
            A(f"v_mul_f32 v{S+8+2*i}, 0xa7000000, v{T+2}")
            A(f"v_mul_f32 v{S+8+2*i+1}, 0xa7000000, v{T+3}")
    def kwrite(o):
        A(f"ds_write_b128 v{VX}, v[{S}:{S+3}] offset:{o}")
        A(f"ds_write_b128 v{VX}, v[{S+4}:{S+7}] offset:{o+16}")
        A(f"ds_write_b128 v{VX}, v[{S+8}:{S+11}] offset:{o+512}")
        A(f"ds_write_b128 v{VX}, v[{S+12}:{S+15}] offset:{o+528}")
    def vconst(b, o):
        for i in range(2):
            A(f"v_lshlrev_b32 v{T+4}, 16, v{b+8+i}")
            A(f"v_and_b32 v{T+1}, 0xffff0000, v{b+8+i}")
            A(f"v_lshlrev_b32 v{T+2}, 16, v{b+10+i}")
            A(f"v_and_b32 v{T+3}, 0xffff0000, v{b+10+i}")
            A(f"v_mul_f32 v{P+2*i}, 0x71800000, v{T+4}")
            A(f"v_mul_f32 v{P+2*i+1}, 0x71800000, v{T+1}")
            A(f"v_mul_f32 v{T+2}, v{T+2}, v{T+4}")
            A(f"v_mul_f32 v{T+3}, v{T+3}, v{T+1}")
            A(f"v_mul_f32 v{P+4+2*i}, 0xa7000000, v{T+2}")
            A(f"v_mul_f32 v{P+4+2*i+1}, 0xa7000000, v{T+3}")
        A(f"ds_write_b128 v{VX+1}, v[{P}:{P+3}] offset:{o}")
        A(f"ds_write_b128 v{VX+1}, v[{P+4}:{P+7}] offset:{o+16}")

    def cst_reads(role):
        if role=="K":
            A(f"ds_read_b128 v[{S}:{S+3}], v{VCST}")
            A(f"ds_read_b128 v[{S+4}:{S+7}], v{VCST} offset:512")
            A(f"v_add_u32 v{VCST}, 1024, v{VCST}")
            return 2
        else:
            A(f"ds_read_b128 v[{S}:{S+3}], v{VCST}")
            A(f"ds_read_b128 v[{S+4}:{S+7}], v{VCST} offset:16")
            A(f"ds_read_b128 v[{S+8}:{S+11}], v{VCST} offset:64")
            A(f"ds_read_b128 v[{S+12}:{S+15}], v{VCST} offset:80")
            A(f"v_add_u32 v{VCST}, 512, v{VCST}")
            return 4

    def produce(role, Rr, b, pts, vw):
        kb = b*STAGE; vb = kb + KBYTES
        A(f"s_waitcnt vmcnt({vw}) lgkmcnt(0)")
        for p in range(4):
            for (Rl, n) in pts.get(p, []): rawload(role, Rl, n)
            if role=="K":
                for n in (2*p, 2*p+1):
                    r = Rr+4*n
                    if PK:
                        A(f"v_pk_fma_f32 v[{r}:{r+1}], v[{r}:{r+1}], v[{S}:{S+1}], v[{S+4}:{S+5}]")
                        A(f"v_pk_fma_f32 v[{r+2}:{r+3}], v[{r+2}:{r+3}], v[{S+2}:{S+3}], v[{S+6}:{S+7}]")
                    else:
                        for j in range(4):
                            A(f"v_fma_f32 v{r+j}, v{r+j}, v{S+j}, v{S+4+j}")
                    A(f"v_cvt_pk_bf16_f32 v{KF+2*n}, v{r}, v{r+1}")
                    A(f"v_cvt_pk_bf16_f32 v{KF+2*n+1}, v{r+2}, v{r+3}")
                    A(f"ds_write_b64 v{VWR}, v[{KF+2*n}:{KF+2*n+1}] offset:{kb+n*544}")
            else:
                for i in (2*p, 2*p+1):
                    r = Rr+4*i
                    cs = S + (i//4)*8 + i%4; cc = cs+4
                    if PK:
                        x = cs & 1; c0 = cs & ~1; c1 = cc & ~1
                        for jj in (0, 2):
                            A(f"v_pk_fma_f32 v[{r+jj}:{r+jj+1}], v[{r+jj}:{r+jj+1}], v[{c0}:{c0+1}], v[{c1}:{c1+1}] op_sel:[0,{x},{x}] op_sel_hi:[1,{x},{x}]")
                    else:
                        for j in range(4):
                            A(f"v_fma_f32 v{r+j}, v{r+j}, v{cs}, v{cc}")
                for j in range(4):
                    A(f"v_cvt_pk_bf16_f32 v{KF+4*j+p}, v{Rr+8*p+j}, v{Rr+8*p+4+j}")
        if role=="V":
            for j in range(4):
                A(f"ds_write_b128 v{VWR}, v[{KF+4*j}:{KF+4*j+3}] offset:{vb+j*1024}")
        for (Rl, n) in pts.get(4, []): rawload(role, Rl, n)

    def consume(role, b, pts):
        kb = b*STAGE; vb = kb + KBYTES
        def pt(k):
            for (Rl, n) in pts.get(k, []): rawload(role, Rl, n)
        for s in range(8):
            A(f"ds_read_b128 v[{KF+4*s}:{KF+4*s+3}], v{VKRD} offset:{kb+s*32}")
        pt(0)
        for s in range(8):
            A(f"s_waitcnt lgkmcnt({7-s})")
            c = "0" if s==0 else f"v[{S}:{S+15}]"
            A(f"v_mfma_f32_32x32x16_bf16 v[{S}:{S+15}], v[{KF+4*s}:{KF+4*s+3}], v[{Q+4*s}:{Q+4*s+3}], {c}")
        for x in range(8):
            A(f"ds_read_b128 v[{KF+4*x}:{KF+4*x+3}], v{VVRD} offset:{vb+x*1024}")
        pt(1)
        A("s_nop 3")
        A(f"v_max3_f32 v{T}, v{S}, v{S+1}, v{S+2}")
        A(f"v_max3_f32 v{T+1}, v{S+3}, v{S+4}, v{S+5}")
        A(f"v_max3_f32 v{T+2}, v{S+6}, v{S+7}, v{S+8}")
        A(f"v_max3_f32 v{T+3}, v{S+9}, v{S+10}, v{S+11}")
        A(f"v_max3_f32 v{T}, v{T}, v{S+12}, v{S+13}")
        A(f"v_max3_f32 v{T+1}, v{T+1}, v{S+14}, v{S+15}")
        A(f"v_max3_f32 v{T}, v{T}, v{T+2}, v{T+3}")
        uid[0]+=1; u=uid[0]
        if LAZY:
            A(f"v_max_f32 v{T}, v{T}, v{T+1}")
            A(f"v_cmp_gt_f32 s[82:83], v{T}, v{MTH}")
            A("s_nop 0")
            A("s_cmp_eq_u64 s[82:83], 0")
            A(f"s_cbranch_scc1 L_nr{u}")
            A(f"v_max_f32 v{T}, v{T}, v{M}")
        else:
            A(f"v_max3_f32 v{T}, v{T}, v{T+1}, v{M}")
        A(f"v_mov_b32 v{T+1}, v{T}")
        A("s_nop 1")
        A(f"v_permlane32_swap_b32 v{T}, v{T+1}")
        A("s_nop 0")
        A(f"v_max_f32 v{T}, v{T}, v{T+1}")
        A(f"v_sub_f32 v{T+2}, v{M}, v{T}")
        A(f"v_mul_f32 v{T+2}, s40, v{T+2}")
        A(f"v_mul_f32 v{NMC}, s44, v{T}")
        A(f"v_exp_f32 v{ALPHA}, v{T+2}")
        A(f"v_mov_b32 v{M}, v{T}")
        A(f"v_add_f32 v{MTH}, s45, v{T}")
        A(f"v_pk_mul_f32 v[{LS2}:{LS2+1}], v[{LS2}:{LS2+1}], v[{ALPHA}:{ALPHA+1}] op_sel_hi:[1,0]")
        for i in range(0, 64, 2):
            A(f"v_pk_mul_f32 v[{O+i}:{O+i+1}], v[{O+i}:{O+i+1}], v[{ALPHA}:{ALPHA+1}] op_sel_hi:[1,0]")
        if LAZY: A(f"L_nr{u}:")
        if PK:
            for r in range(0, 16, 2):
                A(f"v_pk_fma_f32 v[{S+r}:{S+r+1}], v[{S+r}:{S+r+1}], s[40:41], v[{NMC}:{NMC+1}] op_sel_hi:[1,1,0]")
        else:
            for r in range(16):
                A(f"v_fma_f32 v{S+r}, v{S+r}, s40, v{NMC}")
        for r in range(16):
            A(f"v_exp_f32 v{S+r}, v{S+r}")
        pt(2)
        for k in range(8):
            A(f"v_cvt_pk_bf16_f32 v{P+k}, v{S+2*k}, v{S+2*k+1}")
        for i in range(4):
            A(f"v_pk_add_f32 v[{T+2*i}:{T+2*i+1}], v[{S+4*i}:{S+4*i+1}], v[{S+4*i+2}:{S+4*i+3}]")
        A(f"v_pk_add_f32 v[{T}:{T+1}], v[{T}:{T+1}], v[{T+2}:{T+3}]")
        A(f"v_pk_add_f32 v[{T+4}:{T+5}], v[{T+4}:{T+5}], v[{T+6}:{T+7}]")
        nc = cst_reads(role)
        pt(3)
        A(f"s_waitcnt lgkmcnt({nc})")
        for s in range(2):
            for j in range(4):
                x = s*4+j
                A(f"v_mfma_f32_32x32x16_bf16 v[{O+16*j}:{O+16*j+15}], v[{KF+4*x}:{KF+4*x+3}], v[{P+4*s}:{P+4*s+3}], v[{O+16*j}:{O+16*j+15}]")
            if s==0:
                A(f"v_pk_add_f32 v[{T}:{T+1}], v[{T}:{T+1}], v[{T+4}:{T+5}]")
                A(f"v_pk_add_f32 v[{LS2}:{LS2+1}], v[{LS2}:{LS2+1}], v[{T}:{T+1}]")
        pt(4)

    def bar():
        A("s_waitcnt lgkmcnt(0)"); A("s_barrier")
    def setdeep():
        if PF & 2:
            uid[0]+=1
            A(f"s_cmp_lg_u32 s42, {PFAT}")
            A(f"s_cbranch_scc1 L_pf{uid[0]}")
            codepf()
            A(f"L_pf{uid[0]}:")
        A("s_cmp_gt_u32 s42, s61")
        A("s_cselect_b64 vcc, -1, 0")

    A("s_cmp_eq_u32 s39, 0")
    A("s_cbranch_scc0 L_V_entry")
    for role in ("K","V"):
        th = 0 if role=="K" else 1
        shifted = (role=="V" and SHIFT)
        A(f"L_{role}_entry:")
        for n in range(8): rawload(role, RA, n, False)
        A("s_lshl_b32 s43, s36, 15")
        A("s_lshl_b32 s57, s36, 14")
        srd(28, 10, 43, 32768)
        srd(32, 12, 43, 32768)
        srd(84, 14, 57, 16384)
        srd(48, 16, 57, 16384)
        srd(52, 4, 43, 32768)
        A("s_lshl_b32 s60, s59, 8")
        A(f"v_lshlrev_b32 v{T+4}, 4, v{VTID}")
        A(f"v_add_u32 v{T+4}, s60, v{T+4}")
        A("s_lshl_b32 s60, s59, 7")
        A(f"v_lshlrev_b32 v{T+5}, 3, v{VTID}")
        A(f"v_add_u32 v{T+5}, s60, v{T+5}")
        b = KF
        A(f"buffer_load_dwordx4 v[{b}:{b+3}], v{T+4}, s[28:31], 0 offen {nt}")
        A(f"buffer_load_dwordx4 v[{b+4}:{b+7}], v{T+4}, s[32:35], 0 offen {nt}")
        A(f"buffer_load_dwordx2 v[{b+8}:{b+9}], v{T+5}, s[84:87], 0 offen {nt}")
        A(f"buffer_load_dwordx2 v[{b+10}:{b+11}], v{T+5}, s[48:51], 0 offen {nt}")
        if role=="K":
            A(f"s_cmp_ge_u32 s3, {(NROW-32)//4}")
            A("s_cbranch_scc1 L_skip_l1")
            A(f"v_add_u32 v{T+4}, 8192, v{T+4}")
            A(f"v_add_u32 v{T+5}, 4096, v{T+5}")
            b = KF+12
            A(f"buffer_load_dwordx4 v[{b}:{b+3}], v{T+4}, s[28:31], 0 offen {nt}")
            A(f"buffer_load_dwordx4 v[{b+4}:{b+7}], v{T+4}, s[32:35], 0 offen {nt}")
            A(f"buffer_load_dwordx2 v[{b+8}:{b+9}], v{T+5}, s[84:87], 0 offen {nt}")
            A(f"buffer_load_dwordx2 v[{b+10}:{b+11}], v{T+5}, s[48:51], 0 offen {nt}")
            A("L_skip_l1:")
        A(f"v_lshlrev_b32 v{T+2}, 4, v{VLANE}")
        A("s_lshl_b32 s60, s3, 12")
        A(f"v_add_u32 v{T+2}, s60, v{T+2}")
        for n in range(4):
            A(f"buffer_load_dwordx4 v[{Q+4*n}:{Q+4*n+3}], v{T+2}, s[52:55], 0 offen offset:{n*1024} {nt}")
        NB0 = 4
        for n in range(NB0): rawload(role, RB, n, False)
        stamp(4)
        A(f"s_mov_b32 s40, {f32bits(C_SCALE):#x}")
        A(f"s_mov_b32 s41, {f32bits(C_SCALE):#x}")
        A(f"s_mov_b32 s44, {f32bits(-C_SCALE):#x}")
        A(f"s_mov_b32 s45, {f32bits(TH):#x}")
        A("s_lshl_b32 s56, s36, 2")
        A("s_add_u32 s62, s20, s56"); A("s_addc_u32 s63, s21, 0")
        A("s_lshl_b32 s60, s39, 5")
        A(f"v_add_u32 v{T+3}, s60, v{VL32}")
        A(f"v_mul_lo_u32 v{VKRD}, v{T+3}, s80")
        A(f"v_lshl_add_u32 v{VKRD}, v{VH}, 4, v{VKRD}")
        A("s_lshl_b32 s60, s39, 13")
        A(f"v_lshlrev_b32 v{VVRD}, 4, v{VLANE}")
        A(f"v_add_u32 v{VVRD}, s60, v{VVRD}")
        if role=="K":
            A("s_lshl_b32 s60, s38, 4")
            A(f"v_add_u32 v{T+3}, s60, v{VH}")
            A(f"v_mul_lo_u32 v{VWR}, v{T+3}, s80")
            A(f"v_lshl_add_u32 v{VWR}, v{VL32}, 3, v{VWR}")
            A(f"v_lshlrev_b32 v{VCST}, 4, v{VL32}")
            A(f"v_add_u32 v{VCST}, {KC}, v{VCST}")
        else:
            A("s_lshl_b32 s60, s38, 12")
            A(f"v_lshlrev_b32 v{VWR}, 4, v{VLANE}")
            A(f"v_add_u32 v{VWR}, s60, v{VWR}")
            A("s_lshl_b32 s60, s38, 7")
            A(f"s_add_u32 s60, s60, {VC}")
            A(f"v_lshlrev_b32 v{VCST}, 5, v{VH}")
            A(f"v_add_u32 v{VCST}, s60, v{VCST}")
        for i in range(64): A(f"v_mov_b32 v{O+i}, 0")
        A(f"v_mov_b32 v{M}, {f32bits(-3.0e38):#x}")
        A(f"v_mov_b32 v{MTH}, {f32bits(-3.0e38):#x}")
        A(f"v_mov_b32 v{NMC}, 0")
        A(f"v_mov_b32 v{LS2}, 0"); A(f"v_mov_b32 v{LS2+1}, 0")
        A(f"v_lshrrev_b32 v{T}, 4, v{VTID}")
        A(f"v_and_b32 v{T+1}, 15, v{VTID}")
        A(f"v_lshlrev_b32 v{VX}, 10, v{T}")
        A(f"v_lshl_add_u32 v{VX}, v{T+1}, 5, v{VX}")
        A(f"v_add_u32 v{VX}, {KC}, v{VX}")
        A(f"v_lshlrev_b32 v{VX+1}, 5, v{VTID}")
        A(f"v_add_u32 v{VX+1}, {VC}, v{VX+1}")
        A(f"v_lshrrev_b32 v{T}, 4, v{VLANE}")
        A("s_lshl_b32 s60, s3, 4")
        A(f"v_add_u32 v{T}, s60, v{T}")
        A(f"v_mul_lo_u32 v{VX+2}, v{T}, s80")
        A(f"v_lshl_add_u32 v{VX+2}, v{T+1}, 4, v{VX+2}")
        A(f"v_add_u32 v{VX+2}, {QL}, v{VX+2}")
        A("s_lshl_b32 s60, s38, 5")
        A(f"v_add_u32 v{T}, s60, v{VL32}")
        A(f"v_mul_lo_u32 v{VX+3}, v{T}, s80")
        A(f"v_lshl_add_u32 v{VX+3}, v{VH}, 4, v{VX+3}")
        A(f"v_add_u32 v{VX+3}, {QL}, v{VX+3}")
        A(f"s_waitcnt vmcnt({NB0})")
        stamp(5)
        kconst(KF); kwrite(0); rawload(role, RB, 4); vconst(KF, 0)
        for n in range(4):
            A(f"ds_write_b128 v{VX+2}, v[{Q+4*n}:{Q+4*n+3}] offset:{n*4*272}")
        if role=="K":
            A(f"s_cmp_ge_u32 s3, {(NROW-32)//4}")
            A("s_cbranch_scc1 L_skip_p1")
            kconst(KF+12); kwrite(32768); vconst(KF+12, 16384)
            A("L_skip_p1:")
        rawload(role, RB, 5)
        bar()
        stamp(1)
        for s in range(8):
            A(f"ds_read_b128 v[{Q+4*s}:{Q+4*s+3}], v{VX+3} offset:{s*32}")
        cst_reads(role)
        produce(role, RA, 0, {1:[(RB,6)], 3:[(RB,7)]}, 6)
        if shifted:
            cst_reads(role)
            for n in range(4): rawload(role, RA, n)
        bar()
        stamp(2)
        A(f"L_{role}_loop:")
        for par in range(2):
            Rc = (RA, RB)[par]
            Rn = (RB, RA)[par]
            setdeep()
            if not shifted:
                consume(role, par, {0:[(Rc,0)], 1:[(Rc,1)], 2:[(Rc,2)], 3:[(Rc,3)], 4:[(Rc,4)]})
                A("s_sub_u32 s42, s42, 1")
                A("s_cmp_eq_u32 s42, 0")
                A(f"s_cbranch_scc1 L_{role}_epi")
                produce(role, Rn, 1-par, {1:[(Rc,5)], 3:[(Rc,6)], 4:[(Rc,7)]}, 5)
                bar()
            else:
                A("s_cmp_eq_u32 s42, 1")
                A(f"s_cbranch_scc1 L_{role}_last{par}")
                produce(role, Rn, 1-par, {0:[(Rc,4)], 2:[(Rc,5)], 4:[(Rc,6)]}, 4)
                consume(role, par, {0:[(Rc,7)], 1:[(Rn,0)], 2:[(Rn,1)], 3:[(Rn,2)], 4:[(Rn,3)]})
                A("s_sub_u32 s42, s42, 1")
                bar()
        A(f"s_branch L_{role}_loop")
        if shifted:
            for par in range(2):
                A(f"L_{role}_last{par}:")
                A("s_waitcnt lgkmcnt(0)")
                consume(role, par, {})
                if par==0: A(f"s_branch L_{role}_epi")
        A(f"L_{role}_epi:")
        A("s_waitcnt vmcnt(0) lgkmcnt(0)")
        stamp(3)
        A(f"v_add_f32 v{LT}, v{LS2}, v{LS2+1}")
        A(f"v_mov_b32 v{T}, v{LT}")
        A("s_nop 1")
        A(f"v_permlane32_swap_b32 v{LT}, v{T}")
        A("s_nop 0")
        A(f"v_add_f32 v{LT}, v{LT}, v{T}")
        A(f"s_mul_i32 s56, s3, {SLOT}"); A(f"s_add_u32 s56, s56, {KC}")
        A("s_xor_b32 s58, s3, 4")
        A(f"s_mul_i32 s57, s58, {SLOT}"); A(f"s_add_u32 s57, s57, {KC}")
        A(f"v_lshlrev_b32 v{T+1}, 4, v{VLANE}")
        A(f"v_add_u32 v{T+2}, s56, v{T+1}")
        A(f"v_add_u32 v{T+3}, s57, v{T+1}")
        A(f"v_lshlrev_b32 v{T+1}, 3, v{VLANE}")
        A(f"v_add_u32 v{T+4}, s56, v{T+1}")
        A(f"v_add_u32 v{T+5}, s57, v{T+1}")
        A("s_nop 7")
        k=0
        for j in range(4):
            for hh in range(2):
                r = O+16*j+8*(1-th)+4*hh
                A(f"ds_write_b128 v{T+2}, v[{r}:{r+3}] offset:{k*1024}")
                k+=1
        A(f"ds_write_b64 v{T+4}, v[{M}:{M+1}] offset:8192")
        A("s_waitcnt lgkmcnt(0)"); A("s_barrier")
        for k in range(8):
            A(f"ds_read_b128 v[{KF+4*k}:{KF+4*k+3}], v{T+3} offset:{k*1024}")
        A(f"ds_read_b64 v[{VX+4}:{VX+5}], v{T+5} offset:8192")
        A("s_waitcnt lgkmcnt(0)")
        A(f"v_max_f32 v{T}, v{M}, v{VX+4}")
        A(f"v_sub_f32 v{T+1}, v{M}, v{T}")
        A(f"v_sub_f32 v{T+2}, v{VX+4}, v{T}")
        A(f"v_mul_f32 v{T+1}, s40, v{T+1}")
        A(f"v_mul_f32 v{T+2}, s40, v{T+2}")
        A(f"v_exp_f32 v{T+1}, v{T+1}")
        A(f"v_exp_f32 v{T+2}, v{T+2}")
        A(f"v_mov_b32 v{M}, v{T}")
        A(f"v_mul_f32 v{LT}, v{LT}, v{T+1}")
        A(f"v_fmac_f32 v{LT}, v{VX+5}, v{T+2}")
        keep = [O+16*j+8*th+4*hh+c for j in range(4) for hh in range(2) for c in range(4)]
        for idx, r in enumerate(keep):
            A(f"v_mul_f32 v{r}, v{r}, v{T+1}")
            A(f"v_fmac_f32 v{r}, v{KF+idx}, v{T+2}")
        A("s_cmp_eq_u32 s37, 0")
        A(f"s_cbranch_scc1 L_{role}_comb")
        A("s_mul_i32 s56, s36, 3"); A("s_add_u32 s56, s56, s37"); A("s_sub_u32 s56, s56, 1"); A("s_lshl_b32 s56, s56, 3"); A("s_add_u32 s56, s56, s3")
        A(f"s_mul_i32 s56, s56, {SLOT}")
        srd(28, 22, 56, SLOT)
        A(f"v_lshlrev_b32 v{T}, 4, v{VLANE}")
        A(f"v_add_u32 v{T+1}, 4096, v{T}")
        A(f"v_lshlrev_b32 v{T+2}, 3, v{VLANE}")
        A(f"v_add_u32 v{T+2}, 8192, v{T+2}")
        for k in range(8):
            r = keep[4*k]
            A(f"buffer_store_dwordx4 v[{r}:{r+3}], v{T+(k//4)}, s[28:31], 0 offen offset:{(k%4)*1024} sc1")
        A(f"buffer_store_dwordx2 v[{M}:{M+1}], v{T+2}, s[28:31], 0 offen sc1")
        A("s_waitcnt vmcnt(0)")
        A("s_barrier")
        stamp(6)
        stamp_out()
        if role=="K":
            A("s_cmp_lg_u32 s3, 0")
            A("s_cbranch_scc1 L_end")
            A("s_mov_b64 exec, 1")
            A(f"v_mov_b32 v{VX}, 0")
            A(f"v_mov_b32 v{VX+1}, 1")
            A(f"global_atomic_add v{VX}, v{VX+1}, s[62:63]")
        A("s_endpgm")
        A(f"L_{role}_comb:")
        if role=="K":
            A("s_cmp_lg_u32 s3, 0")
            A("s_cbranch_scc1 L_nopoll")
            A(f"v_mov_b32 v{VX}, 0")
            A("L_poll:")
            A(f"global_load_dword v{VX+1}, v{VX}, s[62:63] sc1")
            A("s_waitcnt vmcnt(0)")
            A(f"v_readfirstlane_b32 s58, v{VX+1}")
            A("s_cmp_lt_u32 s58, 3")
            A("s_cbranch_scc1 L_poll")
            A("L_nopoll:")
        A("s_barrier")
        stamp(6)
        A("s_mul_i32 s56, s36, 24"); A("s_add_u32 s56, s56, s3")
        A(f"s_mul_i32 s56, s56, {SLOT}")
        srd(28, 22, 56, SLOT*17)
        A(f"v_lshlrev_b32 v{T}, 4, v{VLANE}")
        A(f"v_lshlrev_b32 v{T+2}, 3, v{VLANE}")
        dst = [RA, RB, KF]
        for t in range(3):
            A(f"v_add_u32 v{T+3}, {t*8*SLOT}, v{T}")
            A(f"v_add_u32 v{T+4}, {t*8*SLOT+4096}, v{T}")
            A(f"v_add_u32 v{T+5}, {t*8*SLOT+8192}, v{T+2}")
            A(f"buffer_load_dwordx2 v[{VX+2*t}:{VX+2*t+1}], v{T+5}, s[28:31], 0 offen sc1")
            for k in range(8):
                r = dst[t]+4*k
                A(f"buffer_load_dwordx4 v[{r}:{r+3}], v{T+3+(k//4)}, s[28:31], 0 offen offset:{(k%4)*1024} sc1")
        srd(32, 18, 43, 32768)
        A("s_lshl_b32 s56, s38, 13")
        A(f"v_lshlrev_b32 v{VTID}, 8, v{VL32}")
        A(f"v_lshl_add_u32 v{VTID}, v{VH}, 5, v{VTID}")
        A(f"v_add_u32 v{VTID}, s56, v{VTID}")
        A("s_waitcnt vmcnt(0)")
        A(f"v_max3_f32 v{T}, v{M}, v{VX}, v{VX+2}")
        A(f"v_max_f32 v{T}, v{T}, v{VX+4}")
        ms = [M, VX, VX+2, VX+4]
        for i, m in enumerate(ms):
            A(f"v_sub_f32 v{T+1+i}, v{m}, v{T}")
        for i in range(4):
            A(f"v_mul_f32 v{T+1+i}, s40, v{T+1+i}")
        for i in range(4):
            A(f"v_exp_f32 v{T+1+i}, v{T+1+i}")
        A("s_nop 0")
        A(f"v_mul_f32 v{LT}, v{LT}, v{T+1}")
        for i in range(3):
            A(f"v_fmac_f32 v{LT}, v{VX+2*i+1}, v{T+2+i}")
        A(f"v_rcp_f32 v{T}, v{LT}")
        A("s_nop 0")
        A(f"v_mul_f32 v{T}, 0x58000000, v{T}")
        for i in range(4):
            A(f"v_mul_f32 v{T+1+i}, v{T+1+i}, v{T}")
        for idx, r in enumerate(keep):
            A(f"v_mul_f32 v{r}, v{r}, v{T+1}")
            for t in range(3):
                A(f"v_fmac_f32 v{r}, v{dst[t]+idx}, v{T+2+t}")
        for a in range(2):
            for c in range(4):
                r = 8*th+4*a+c
                A(f"v_cvt_pk_bf16_f32 v{S+8*a+2*c}, v{O+r}, v{O+16+r}")
                A(f"v_cvt_pk_bf16_f32 v{S+8*a+2*c+1}, v{O+32+r}, v{O+48+r}")
            A(f"buffer_store_dwordx4 v[{S+8*a}:{S+8*a+3}], v{VTID}, s[32:35], 0 offen offset:{128*th+64*a}")
            A(f"buffer_store_dwordx4 v[{S+8*a+4}:{S+8*a+7}], v{VTID}, s[32:35], 0 offen offset:{128*th+64*a+16}")
        if stamps:
            A("s_waitcnt vmcnt(0)")
            stamp(7)
            stamp_out()
        A("s_endpgm")
    A("L_end:"); A("s_endpgm")
    A('.section .rodata,"a"'); A(".p2align 6"); A(f".amdhsa_kernel {KNAME}")
    A("  .amdhsa_next_free_vgpr 256"); A("  .amdhsa_next_free_sgpr 96"); A("  .amdhsa_accum_offset 256")
    A("  .amdhsa_float_denorm_mode_32 3")
    A("  .amdhsa_group_segment_fixed_size 0"); A("  .amdhsa_kernarg_size 80"); A("  .amdhsa_user_sgpr_count 2")
    A("  .amdhsa_user_sgpr_kernarg_segment_ptr 1"); A("  .amdhsa_system_sgpr_workgroup_id_x 1"); A(".end_amdhsa_kernel")
    open(name, "w").write("\n".join(L) + "\n")

if __name__ == "__main__":
    kw = {}
    for a in sys.argv[2:]:
        if a == "--stamps": kw["stamps"] = 1
        elif a.startswith("--"):
            k, v = a[2:].split("=")
            kw[k] = tuple(int(x) for x in v.split(",")) if "," in v else int(v)
    gen(sys.argv[1], **kw)
```

```python
import sys, struct, math
KNAME = "standalone__kv_cache_quant_int4_int2_kv_with_per_channel_or_per_token_scales__sampling_kernel"
HDR = open("standalone__kv_cache_quant_int4_int2_kv_with_per_channel_or_per_token_scales__sampling.s.ref").read().split("; Override")[0]

def f32bits(x): return struct.unpack("<I", struct.pack("<f", x))[0]

O=0; Q=64; S=96; KF=112; P=144; RA=152; RB=184
M=216; LT=217; LS2=218; NMC=220; MTH=221; ALPHA=222
T=224
VKRD=232; VVRD=233; VWR=234; VCST=235; VOFFA=236; VOFFB=237; VLANE=238; VTID=239; VL32=240; VH=241
VX=242
STAGE=33792; KBYTES=17408
SLOT=8704
C_SCALE = (128 ** -0.5) * math.log2(math.e) * 2.0**49
TH = 8.0 / C_SCALE

def gen(name, nt="nt", stamps=0, D=3, NC=35, DEEP=6, DEEPP=0, PK=1, LAZY=1, SHIFT=1, PF=0, PFAT=5):
    NPB = (128-NC)//3
    assert NC + 3*NPB == 128
    NROW = max(36, (NC+3)//4*4)
    QL=STAGE; KC=2*STAGE+1024; VC=KC+NROW*1024; LDS_TOTAL=KC+max(NROW*1536+1024, 8*SLOT)
    assert LDS_TOTAL <= 163840
    L=[]; A=L.append
    uid=[0]
    def stamp(i):
        if stamps: A(f"s_memrealtime s[{64+2*i}:{65+2*i}]")
    def stamp_out(kind=0):
        if not stamps: return
        if stamps == 2:
            uid[0]+=1; u=uid[0]
            A("s_waitcnt lgkmcnt(0)")
            A("s_cmp_lg_u32 s3, 0"); A(f"s_cbranch_scc1 L_so{u}")
            A("s_mov_b64 exec, 1")
            A("v_mov_b32 v8, 0")
            def amax(idx, sreg, neg=False):
                if neg:
                    A(f"s_not_b32 s56, {sreg}"); A("v_mov_b32 v9, s56")
                else: A(f"v_mov_b32 v9, {sreg}")
                A(f"global_atomic_umax v8, v9, s[20:21] offset:{4*idx}")
            def asum(idx, sreg):
                A(f"s_sub_u32 s56, {sreg}, s64"); A("v_mov_b32 v9, s56")
                A(f"global_atomic_add v8, v9, s[20:21] offset:{4*idx}")
            amax(0, "s64", True); amax(1, "s64"); asum(2, "s66"); asum(3, "s68")
            if kind == 0:
                amax(4, "s70"); asum(5, "s70"); amax(6, "s76"); asum(7, "s76"); amax(14, "s70", True)
            else:
                amax(8, "s70"); asum(9, "s70"); amax(10, "s76"); asum(11, "s76"); amax(12, "s78"); asum(13, "s78")
            A(f"L_so{u}:")
            return
        A("s_waitcnt lgkmcnt(0)")
        A("s_lshl_b32 s56, s2, 3"); A("s_add_u32 s56, s56, s3"); A("s_lshl_b32 s56, s56, 6"); A("s_add_u32 s56, s56, 0x4000000")
        A("s_add_u32 s28, s22, s56"); A("s_addc_u32 s29, s23, 0"); A("s_mov_b32 s30, 64"); A("s_mov_b32 s31, 0x20000")
        A("s_mov_b64 exec, 1")
        for i in range(8):
            A(f"v_mov_b32 v{i}, s{64+2*i}")
        A("v_mov_b32 v8, 0"); A("v_mov_b32 v9, s37")
        A("buffer_store_dwordx4 v[0:3], v8, s[28:31], 0 offen")
        A("buffer_store_dwordx4 v[4:7], v8, s[28:31], 0 offen offset:16")
        A("buffer_store_dword v9, v8, s[28:31], 0 offen offset:32")
    A(HDR.rstrip())
    A(f"; @launch grid=(256,1,1) block=(512,1,1) lds={LDS_TOTAL}")
    A('.amdgcn_target "amdgcn-amd-amdhsa--gfx950"')
    A(".text"); A(f".globl {KNAME}"); A(".p2align 8"); A(f".type {KNAME},@function"); A(f"{KNAME}:")
    A("s_cmp_ge_u32 s2, 256"); A("s_cbranch_scc1 L_end")
    for i in range(8): stamp(i)
    A("s_load_dwordx16 s[4:19], s[0:1], 0")
    A("s_load_dwordx4 s[20:23], s[0:1], 64")
    A(f"v_lshrrev_b32 v{T}, 6, v0")
    A(f"v_and_b32 v{VLANE}, 63, v0")
    A(f"v_mov_b32 v{VTID}, v0")
    A(f"v_readfirstlane_b32 s3, v{T}")
    A(f"v_and_b32 v{VL32}, 31, v0")
    A(f"v_bfe_u32 v{VH}, v0, 5, 1")
    def codepf(dst=VX):
        A(f"v_lshlrev_b32 v{VX+4}, 4, v{VTID}")
        for i in range(3):
            A(f"v_min_u32 v{VX+5}, s90, v{VX+4}")
            A(f"global_load_dwordx4 v[{dst}:{dst+3}], v{VX+5}, s[88:89]")
            if i < 2: A(f"v_add_u32 v{VX+4}, 8192, v{VX+4}")
    if PF:
        A("s_getpc_b64 s[88:89]")
        A("L_pc:")
        A(f"s_sub_u32 s88, s88, L_pc-{KNAME}")
        A("s_subb_u32 s89, s89, 0")
        A(f"s_mov_b32 s90, (L_end-{KNAME}-16)&0xfffffff0")
        if PF & 1: codepf(S)
    A("s_lshr_b32 s36, s2, 2")
    A("s_lshr_b32 s37, s2, 3")
    A("s_add_u32 s37, s37, s2")
    A("s_and_b32 s37, s37, 3")
    A("s_and_b32 s38, s3, 3")
    A("s_lshr_b32 s39, s3, 2")
    A(f"s_mul_i32 s59, s37, {NPB}")
    A(f"s_add_u32 s59, s59, {NC-NPB}")
    A("s_cmp_eq_u32 s37, 0")
    A("s_cselect_b32 s59, 0, s59")
    A(f"s_movk_i32 s42, {NPB}")
    A(f"s_cselect_b32 s42, {NC}, s42")
    A(f"s_movk_i32 s61, {DEEPP}")
    A(f"s_cselect_b32 s61, {DEEP}, s61")
    A("s_lshl_b32 s58, s36, 22")
    A("s_lshl_b32 s60, s59, 15")
    A("s_add_u32 s58, s58, s60")
    A("s_lshl_b32 s60, s38, 13")
    A("s_movk_i32 s80, 272")
    A("s_mov_b64 vcc, -1")
    A("s_cmp_eq_u32 s39, 0")
    A("s_cbranch_scc0 L_v0")
    A(f"v_lshlrev_b32 v{VOFFA}, 4, v{VLANE}")
    A("s_branch L_v1")
    A("L_v0:")
    A(f"v_lshlrev_b32 v{VOFFA}, 4, v{VL32}")
    A(f"v_lshl_add_u32 v{VOFFA}, v{VH}, 11, v{VOFFA}")
    A("L_v1:")
    A(f"v_add_u32 v{VOFFA}, s60, v{VOFFA}")
    A(f"v_add_u32 v{VOFFB}, 4096, v{VOFFA}")
    A("s_waitcnt lgkmcnt(0)")
    A("s_cmp_eq_u32 s39, 0")
    A("s_cselect_b32 s24, s6, s8"); A("s_cselect_b32 s25, s7, s9")
    A("s_add_u32 s24, s24, s58"); A("s_addc_u32 s25, s25, 0")
    A("s_lshl_b32 s26, s42, 15"); A("s_mov_b32 s27, 0x20000")
    def srd(d, p, off, size):
        A(f"s_add_u32 s{d}, s{p}, s{off}"); A(f"s_addc_u32 s{d+1}, s{p+1}, 0")
        A(f"s_mov_b32 s{d+2}, {size}"); A(f"s_mov_b32 s{d+3}, 0x20000")
    def rawload(role, Rr, n, wait=True):
        step = 1024 if role=="K" else 512
        vo = VOFFA if n<4 else VOFFB
        if wait:
            uid[0]+=1
            A(f"s_cbranch_vccz L_w{uid[0]}")
            A(f"s_waitcnt vmcnt({D-1})")
            A(f"L_w{uid[0]}:")
        A(f"buffer_load_dwordx4 v[{Rr+4*n}:{Rr+4*n+3}], v{vo}, s[24:27], 0 offen offset:{(n%4)*step} {nt}")
        if n==3: A(f"v_add_u32 v{VOFFA}, 0x8000, v{VOFFA}")
        if n==7: A(f"v_add_u32 v{VOFFB}, 0x8000, v{VOFFB}")

    def kconst(b):
        for i in range(4):
            A(f"v_lshlrev_b32 v{T}, 16, v{b+i}")
            A(f"v_and_b32 v{T+1}, 0xffff0000, v{b+i}")
            A(f"v_lshlrev_b32 v{T+2}, 16, v{b+4+i}")
            A(f"v_and_b32 v{T+3}, 0xffff0000, v{b+4+i}")
            A(f"v_mul_f32 v{S+2*i}, 0x71800000, v{T}")
            A(f"v_mul_f32 v{S+2*i+1}, 0x71800000, v{T+1}")
            A(f"v_mul_f32 v{T+2}, v{T+2}, v{T}")
            A(f"v_mul_f32 v{T+3}, v{T+3}, v{T+1}")
            A(f"v_mul_f32 v{S+8+2*i}, 0xa7000000, v{T+2}")
            A(f"v_mul_f32 v{S+8+2*i+1}, 0xa7000000, v{T+3}")
    def kwrite(o):
        A(f"ds_write_b128 v{VX}, v[{S}:{S+3}] offset:{o}")
        A(f"ds_write_b128 v{VX}, v[{S+4}:{S+7}] offset:{o+16}")
        A(f"ds_write_b128 v{VX}, v[{S+8}:{S+11}] offset:{o+512}")
        A(f"ds_write_b128 v{VX}, v[{S+12}:{S+15}] offset:{o+528}")
    def vconst(b, o):
        for i in range(2):
            A(f"v_lshlrev_b32 v{T+4}, 16, v{b+8+i}")
            A(f"v_and_b32 v{T+1}, 0xffff0000, v{b+8+i}")
            A(f"v_lshlrev_b32 v{T+2}, 16, v{b+10+i}")
            A(f"v_and_b32 v{T+3}, 0xffff0000, v{b+10+i}")
            A(f"v_mul_f32 v{P+2*i}, 0x71800000, v{T+4}")
            A(f"v_mul_f32 v{P+2*i+1}, 0x71800000, v{T+1}")
            A(f"v_mul_f32 v{T+2}, v{T+2}, v{T+4}")
            A(f"v_mul_f32 v{T+3}, v{T+3}, v{T+1}")
            A(f"v_mul_f32 v{P+4+2*i}, 0xa7000000, v{T+2}")
            A(f"v_mul_f32 v{P+4+2*i+1}, 0xa7000000, v{T+3}")
        A(f"ds_write_b128 v{VX+1}, v[{P}:{P+3}] offset:{o}")
        A(f"ds_write_b128 v{VX+1}, v[{P+4}:{P+7}] offset:{o+16}")

    def cst_reads(role):
        if role=="K":
            A(f"ds_read_b128 v[{S}:{S+3}], v{VCST}")
            A(f"ds_read_b128 v[{S+4}:{S+7}], v{VCST} offset:512")
            A(f"v_add_u32 v{VCST}, 1024, v{VCST}")
            return 2
        else:
            A(f"ds_read_b128 v[{S}:{S+3}], v{VCST}")
            A(f"ds_read_b128 v[{S+4}:{S+7}], v{VCST} offset:16")
            A(f"ds_read_b128 v[{S+8}:{S+11}], v{VCST} offset:64")
            A(f"ds_read_b128 v[{S+12}:{S+15}], v{VCST} offset:80")
            A(f"v_add_u32 v{VCST}, 512, v{VCST}")
            return 4

    def produce(role, Rr, b, pts, vw):
        kb = b*STAGE; vb = kb + KBYTES
        A(f"s_waitcnt vmcnt({vw}) lgkmcnt(0)")
        for p in range(4):
            for (Rl, n) in pts.get(p, []): rawload(role, Rl, n)
            if role=="K":
                for n in (2*p, 2*p+1):
                    r = Rr+4*n
                    if PK:
                        A(f"v_pk_fma_f32 v[{r}:{r+1}], v[{r}:{r+1}], v[{S}:{S+1}], v[{S+4}:{S+5}]")
                        A(f"v_pk_fma_f32 v[{r+2}:{r+3}], v[{r+2}:{r+3}], v[{S+2}:{S+3}], v[{S+6}:{S+7}]")
                    else:
                        for j in range(4):
                            A(f"v_fma_f32 v{r+j}, v{r+j}, v{S+j}, v{S+4+j}")
                    A(f"v_cvt_pk_bf16_f32 v{KF+2*n}, v{r}, v{r+1}")
                    A(f"v_cvt_pk_bf16_f32 v{KF+2*n+1}, v{r+2}, v{r+3}")
                    A(f"ds_write_b64 v{VWR}, v[{KF+2*n}:{KF+2*n+1}] offset:{kb+n*544}")
            else:
                for i in (2*p, 2*p+1):
                    r = Rr+4*i
                    cs = S + (i//4)*8 + i%4; cc = cs+4
                    if PK:
                        x = cs & 1; c0 = cs & ~1; c1 = cc & ~1
                        for jj in (0, 2):
                            A(f"v_pk_fma_f32 v[{r+jj}:{r+jj+1}], v[{r+jj}:{r+jj+1}], v[{c0}:{c0+1}], v[{c1}:{c1+1}] op_sel:[0,{x},{x}] op_sel_hi:[1,{x},{x}]")
                    else:
                        for j in range(4):
                            A(f"v_fma_f32 v{r+j}, v{r+j}, v{cs}, v{cc}")
                for j in range(4):
                    A(f"v_cvt_pk_bf16_f32 v{KF+4*j+p}, v{Rr+8*p+j}, v{Rr+8*p+4+j}")
        if role=="V":
            for j in range(4):
                A(f"ds_write_b128 v{VWR}, v[{KF+4*j}:{KF+4*j+3}] offset:{vb+j*1024}")
        for (Rl, n) in pts.get(4, []): rawload(role, Rl, n)

    def consume(role, b, pts):
        kb = b*STAGE; vb = kb + KBYTES
        def pt(k):
            for (Rl, n) in pts.get(k, []): rawload(role, Rl, n)
        for s in range(8):
            A(f"ds_read_b128 v[{KF+4*s}:{KF+4*s+3}], v{VKRD} offset:{kb+s*32}")
        pt(0)
        for s in range(8):
            A(f"s_waitcnt lgkmcnt({7-s})")
            c = "0" if s==0 else f"v[{S}:{S+15}]"
            A(f"v_mfma_f32_32x32x16_bf16 v[{S}:{S+15}], v[{KF+4*s}:{KF+4*s+3}], v[{Q+4*s}:{Q+4*s+3}], {c}")
        for x in range(8):
            A(f"ds_read_b128 v[{KF+4*x}:{KF+4*x+3}], v{VVRD} offset:{vb+x*1024}")
        pt(1)
        A("s_nop 3")
        A(f"v_max3_f32 v{T}, v{S}, v{S+1}, v{S+2}")
        A(f"v_max3_f32 v{T+1}, v{S+3}, v{S+4}, v{S+5}")
        A(f"v_max3_f32 v{T+2}, v{S+6}, v{S+7}, v{S+8}")
        A(f"v_max3_f32 v{T+3}, v{S+9}, v{S+10}, v{S+11}")
        A(f"v_max3_f32 v{T}, v{T}, v{S+12}, v{S+13}")
        A(f"v_max3_f32 v{T+1}, v{T+1}, v{S+14}, v{S+15}")
        A(f"v_max3_f32 v{T}, v{T}, v{T+2}, v{T+3}")
        uid[0]+=1; u=uid[0]
        if LAZY:
            A(f"v_max_f32 v{T}, v{T}, v{T+1}")
            A(f"v_cmp_gt_f32 s[82:83], v{T}, v{MTH}")
            A("s_nop 0")
            A("s_cmp_eq_u64 s[82:83], 0")
            A(f"s_cbranch_scc1 L_nr{u}")
            A(f"v_max_f32 v{T}, v{T}, v{M}")
        else:
            A(f"v_max3_f32 v{T}, v{T}, v{T+1}, v{M}")
        A(f"v_mov_b32 v{T+1}, v{T}")
        A("s_nop 1")
        A(f"v_permlane32_swap_b32 v{T}, v{T+1}")
        A("s_nop 0")
        A(f"v_max_f32 v{T}, v{T}, v{T+1}")
        A(f"v_sub_f32 v{T+2}, v{M}, v{T}")
        A(f"v_mul_f32 v{T+2}, s40, v{T+2}")
        A(f"v_mul_f32 v{NMC}, s44, v{T}")
        A(f"v_exp_f32 v{ALPHA}, v{T+2}")
        A(f"v_mov_b32 v{M}, v{T}")
        A(f"v_add_f32 v{MTH}, s45, v{T}")
        A(f"v_pk_mul_f32 v[{LS2}:{LS2+1}], v[{LS2}:{LS2+1}], v[{ALPHA}:{ALPHA+1}] op_sel_hi:[1,0]")
        for i in range(0, 64, 2):
            A(f"v_pk_mul_f32 v[{O+i}:{O+i+1}], v[{O+i}:{O+i+1}], v[{ALPHA}:{ALPHA+1}] op_sel_hi:[1,0]")
        if LAZY: A(f"L_nr{u}:")
        if PK:
            for r in range(0, 16, 2):
                A(f"v_pk_fma_f32 v[{S+r}:{S+r+1}], v[{S+r}:{S+r+1}], s[40:41], v[{NMC}:{NMC+1}] op_sel_hi:[1,1,0]")
        else:
            for r in range(16):
                A(f"v_fma_f32 v{S+r}, v{S+r}, s40, v{NMC}")
        for r in range(16):
            A(f"v_exp_f32 v{S+r}, v{S+r}")
        pt(2)
        for k in range(8):
            A(f"v_cvt_pk_bf16_f32 v{P+k}, v{S+2*k}, v{S+2*k+1}")
        for i in range(4):
            A(f"v_pk_add_f32 v[{T+2*i}:{T+2*i+1}], v[{S+4*i}:{S+4*i+1}], v[{S+4*i+2}:{S+4*i+3}]")
        A(f"v_pk_add_f32 v[{T}:{T+1}], v[{T}:{T+1}], v[{T+2}:{T+3}]")
        A(f"v_pk_add_f32 v[{T+4}:{T+5}], v[{T+4}:{T+5}], v[{T+6}:{T+7}]")
        nc = cst_reads(role)
        pt(3)
        A(f"s_waitcnt lgkmcnt({nc})")
        for s in range(2):
            for j in range(4):
                x = s*4+j
                A(f"v_mfma_f32_32x32x16_bf16 v[{O+16*j}:{O+16*j+15}], v[{KF+4*x}:{KF+4*x+3}], v[{P+4*s}:{P+4*s+3}], v[{O+16*j}:{O+16*j+15}]")
            if s==0:
                A(f"v_pk_add_f32 v[{T}:{T+1}], v[{T}:{T+1}], v[{T+4}:{T+5}]")
                A(f"v_pk_add_f32 v[{LS2}:{LS2+1}], v[{LS2}:{LS2+1}], v[{T}:{T+1}]")
        pt(4)

    def bar():
        A("s_waitcnt lgkmcnt(0)"); A("s_barrier")
    def setdeep():
        if PF & 2:
            uid[0]+=1
            A(f"s_cmp_lg_u32 s42, {PFAT}")
            A(f"s_cbranch_scc1 L_pf{uid[0]}")
            codepf()
            A(f"L_pf{uid[0]}:")
        A("s_cmp_gt_u32 s42, s61")
        A("s_cselect_b64 vcc, -1, 0")

    A("s_cmp_eq_u32 s39, 0")
    A("s_cbranch_scc0 L_V_entry")
    for role in ("K","V"):
        th = 0 if role=="K" else 1
        shifted = (role=="V" and SHIFT)
        A(f"L_{role}_entry:")
        for n in range(8): rawload(role, RA, n, False)
        A("s_lshl_b32 s43, s36, 15")
        A("s_lshl_b32 s57, s36, 14")
        srd(28, 10, 43, 32768)
        srd(32, 12, 43, 32768)
        srd(84, 14, 57, 16384)
        srd(48, 16, 57, 16384)
        srd(52, 4, 43, 32768)
        A("s_lshl_b32 s60, s59, 8")
        A(f"v_lshlrev_b32 v{T+4}, 4, v{VTID}")
        A(f"v_add_u32 v{T+4}, s60, v{T+4}")
        A("s_lshl_b32 s60, s59, 7")
        A(f"v_lshlrev_b32 v{T+5}, 3, v{VTID}")
        A(f"v_add_u32 v{T+5}, s60, v{T+5}")
        b = KF
        A(f"buffer_load_dwordx4 v[{b}:{b+3}], v{T+4}, s[28:31], 0 offen {nt}")
        A(f"buffer_load_dwordx4 v[{b+4}:{b+7}], v{T+4}, s[32:35], 0 offen {nt}")
        A(f"buffer_load_dwordx2 v[{b+8}:{b+9}], v{T+5}, s[84:87], 0 offen {nt}")
        A(f"buffer_load_dwordx2 v[{b+10}:{b+11}], v{T+5}, s[48:51], 0 offen {nt}")
        if role=="K":
            A(f"s_cmp_ge_u32 s3, {(NROW-32)//4}")
            A("s_cbranch_scc1 L_skip_l1")
            A(f"v_add_u32 v{T+4}, 8192, v{T+4}")
            A(f"v_add_u32 v{T+5}, 4096, v{T+5}")
            b = KF+12
            A(f"buffer_load_dwordx4 v[{b}:{b+3}], v{T+4}, s[28:31], 0 offen {nt}")
            A(f"buffer_load_dwordx4 v[{b+4}:{b+7}], v{T+4}, s[32:35], 0 offen {nt}")
            A(f"buffer_load_dwordx2 v[{b+8}:{b+9}], v{T+5}, s[84:87], 0 offen {nt}")
            A(f"buffer_load_dwordx2 v[{b+10}:{b+11}], v{T+5}, s[48:51], 0 offen {nt}")
            A("L_skip_l1:")
        A(f"v_lshlrev_b32 v{T+2}, 4, v{VLANE}")
        A("s_lshl_b32 s60, s3, 12")
        A(f"v_add_u32 v{T+2}, s60, v{T+2}")
        for n in range(4):
            A(f"buffer_load_dwordx4 v[{Q+4*n}:{Q+4*n+3}], v{T+2}, s[52:55], 0 offen offset:{n*1024} {nt}")
        NB0 = 4
        for n in range(NB0): rawload(role, RB, n, False)
        stamp(4)
        A(f"s_mov_b32 s40, {f32bits(C_SCALE):#x}")
        A(f"s_mov_b32 s41, {f32bits(C_SCALE):#x}")
        A(f"s_mov_b32 s44, {f32bits(-C_SCALE):#x}")
        A(f"s_mov_b32 s45, {f32bits(TH):#x}")
        if stamps == 2:
            A("s_lshr_b32 s56, s36, 4"); A("s_lshl_b32 s56, s56, 2"); A("s_add_u32 s56, s56, 240")
            A("s_and_b32 s91, s36, 15"); A("s_lshl_b32 s91, s91, 1"); A("s_lshl_b32 s92, 1, s91"); A("s_mov_b32 s93, 0")
        else:
            A("s_lshl_b32 s56, s36, 2")
        A("s_add_u32 s62, s20, s56"); A("s_addc_u32 s63, s21, 0")
        A("s_lshl_b32 s60, s39, 5")
        A(f"v_add_u32 v{T+3}, s60, v{VL32}")
        A(f"v_mul_lo_u32 v{VKRD}, v{T+3}, s80")
        A(f"v_lshl_add_u32 v{VKRD}, v{VH}, 4, v{VKRD}")
        A("s_lshl_b32 s60, s39, 13")
        A(f"v_lshlrev_b32 v{VVRD}, 4, v{VLANE}")
        A(f"v_add_u32 v{VVRD}, s60, v{VVRD}")
        if role=="K":
            A("s_lshl_b32 s60, s38, 4")
            A(f"v_add_u32 v{T+3}, s60, v{VH}")
            A(f"v_mul_lo_u32 v{VWR}, v{T+3}, s80")
            A(f"v_lshl_add_u32 v{VWR}, v{VL32}, 3, v{VWR}")
            A(f"v_lshlrev_b32 v{VCST}, 4, v{VL32}")
            A(f"v_add_u32 v{VCST}, {KC}, v{VCST}")
        else:
            A("s_lshl_b32 s60, s38, 12")
            A(f"v_lshlrev_b32 v{VWR}, 4, v{VLANE}")
            A(f"v_add_u32 v{VWR}, s60, v{VWR}")
            A("s_lshl_b32 s60, s38, 7")
            A(f"s_add_u32 s60, s60, {VC}")
            A(f"v_lshlrev_b32 v{VCST}, 5, v{VH}")
            A(f"v_add_u32 v{VCST}, s60, v{VCST}")
        for i in range(64): A(f"v_mov_b32 v{O+i}, 0")
        A(f"v_mov_b32 v{M}, {f32bits(-3.0e38):#x}")
        A(f"v_mov_b32 v{MTH}, {f32bits(-3.0e38):#x}")
        A(f"v_mov_b32 v{NMC}, 0")
        A(f"v_mov_b32 v{LS2}, 0"); A(f"v_mov_b32 v{LS2+1}, 0")
        A(f"v_lshrrev_b32 v{T}, 4, v{VTID}")
        A(f"v_and_b32 v{T+1}, 15, v{VTID}")
        A(f"v_lshlrev_b32 v{VX}, 10, v{T}")
        A(f"v_lshl_add_u32 v{VX}, v{T+1}, 5, v{VX}")
        A(f"v_add_u32 v{VX}, {KC}, v{VX}")
        A(f"v_lshlrev_b32 v{VX+1}, 5, v{VTID}")
        A(f"v_add_u32 v{VX+1}, {VC}, v{VX+1}")
        A(f"v_lshrrev_b32 v{T}, 4, v{VLANE}")
        A("s_lshl_b32 s60, s3, 4")
        A(f"v_add_u32 v{T}, s60, v{T}")
        A(f"v_mul_lo_u32 v{VX+2}, v{T}, s80")
        A(f"v_lshl_add_u32 v{VX+2}, v{T+1}, 4, v{VX+2}")
        A(f"v_add_u32 v{VX+2}, {QL}, v{VX+2}")
        A("s_lshl_b32 s60, s38, 5")
        A(f"v_add_u32 v{T}, s60, v{VL32}")
        A(f"v_mul_lo_u32 v{VX+3}, v{T}, s80")
        A(f"v_lshl_add_u32 v{VX+3}, v{VH}, 4, v{VX+3}")
        A(f"v_add_u32 v{VX+3}, {QL}, v{VX+3}")
        A(f"s_waitcnt vmcnt({NB0})")
        stamp(5)
        kconst(KF); kwrite(0); rawload(role, RB, 4); vconst(KF, 0)
        for n in range(4):
            A(f"ds_write_b128 v{VX+2}, v[{Q+4*n}:{Q+4*n+3}] offset:{n*4*272}")
        if role=="K":
            A(f"s_cmp_ge_u32 s3, {(NROW-32)//4}")
            A("s_cbranch_scc1 L_skip_p1")
            kconst(KF+12); kwrite(32768); vconst(KF+12, 16384)
            A("L_skip_p1:")
        rawload(role, RB, 5)
        bar()
        stamp(1)
        for s in range(8):
            A(f"ds_read_b128 v[{Q+4*s}:{Q+4*s+3}], v{VX+3} offset:{s*32}")
        cst_reads(role)
        produce(role, RA, 0, {1:[(RB,6)], 3:[(RB,7)]}, 6)
        if shifted:
            cst_reads(role)
            for n in range(4): rawload(role, RA, n)
        bar()
        stamp(2)
        A(f"L_{role}_loop:")
        for par in range(2):
            Rc = (RA, RB)[par]
            Rn = (RB, RA)[par]
            setdeep()
            if not shifted:
                consume(role, par, {0:[(Rc,0)], 1:[(Rc,1)], 2:[(Rc,2)], 3:[(Rc,3)], 4:[(Rc,4)]})
                A("s_sub_u32 s42, s42, 1")
                A("s_cmp_eq_u32 s42, 0")
                A(f"s_cbranch_scc1 L_{role}_epi")
                produce(role, Rn, 1-par, {1:[(Rc,5)], 3:[(Rc,6)], 4:[(Rc,7)]}, 5)
                bar()
            else:
                A("s_cmp_eq_u32 s42, 1")
                A(f"s_cbranch_scc1 L_{role}_last{par}")
                produce(role, Rn, 1-par, {0:[(Rc,4)], 2:[(Rc,5)], 4:[(Rc,6)]}, 4)
                consume(role, par, {0:[(Rc,7)], 1:[(Rn,0)], 2:[(Rn,1)], 3:[(Rn,2)], 4:[(Rn,3)]})
                A("s_sub_u32 s42, s42, 1")
                bar()
        A(f"s_branch L_{role}_loop")
        if shifted:
            for par in range(2):
                A(f"L_{role}_last{par}:")
                A("s_waitcnt lgkmcnt(0)")
                consume(role, par, {})
                if par==0: A(f"s_branch L_{role}_epi")
        A(f"L_{role}_epi:")
        A("s_waitcnt vmcnt(0) lgkmcnt(0)")
        stamp(3)
        A(f"v_add_f32 v{LT}, v{LS2}, v{LS2+1}")
        A(f"v_mov_b32 v{T}, v{LT}")
        A("s_nop 1")
        A(f"v_permlane32_swap_b32 v{LT}, v{T}")
        A("s_nop 0")
        A(f"v_add_f32 v{LT}, v{LT}, v{T}")
        A(f"s_mul_i32 s56, s3, {SLOT}"); A(f"s_add_u32 s56, s56, {KC}")
        A("s_xor_b32 s58, s3, 4")
        A(f"s_mul_i32 s57, s58, {SLOT}"); A(f"s_add_u32 s57, s57, {KC}")
        A(f"v_lshlrev_b32 v{T+1}, 4, v{VLANE}")
        A(f"v_add_u32 v{T+2}, s56, v{T+1}")
        A(f"v_add_u32 v{T+3}, s57, v{T+1}")
        A(f"v_lshlrev_b32 v{T+1}, 3, v{VLANE}")
        A(f"v_add_u32 v{T+4}, s56, v{T+1}")
        A(f"v_add_u32 v{T+5}, s57, v{T+1}")
        A("s_nop 7")
        k=0
        for j in range(4):
            for hh in range(2):
                r = O+16*j+8*(1-th)+4*hh
                A(f"ds_write_b128 v{T+2}, v[{r}:{r+3}] offset:{k*1024}")
                k+=1
        A(f"ds_write_b64 v{T+4}, v[{M}:{M+1}] offset:8192")
        A("s_waitcnt lgkmcnt(0)"); A("s_barrier")
        for k in range(8):
            A(f"ds_read_b128 v[{KF+4*k}:{KF+4*k+3}], v{T+3} offset:{k*1024}")
        A(f"ds_read_b64 v[{VX+4}:{VX+5}], v{T+5} offset:8192")
        A("s_waitcnt lgkmcnt(0)")
        A(f"v_max_f32 v{T}, v{M}, v{VX+4}")
        A(f"v_sub_f32 v{T+1}, v{M}, v{T}")
        A(f"v_sub_f32 v{T+2}, v{VX+4}, v{T}")
        A(f"v_mul_f32 v{T+1}, s40, v{T+1}")
        A(f"v_mul_f32 v{T+2}, s40, v{T+2}")
        A(f"v_exp_f32 v{T+1}, v{T+1}")
        A(f"v_exp_f32 v{T+2}, v{T+2}")
        A(f"v_mov_b32 v{M}, v{T}")
        A(f"v_mul_f32 v{LT}, v{LT}, v{T+1}")
        A(f"v_fmac_f32 v{LT}, v{VX+5}, v{T+2}")
        keep = [O+16*j+8*th+4*hh+c for j in range(4) for hh in range(2) for c in range(4)]
        for idx, r in enumerate(keep):
            A(f"v_mul_f32 v{r}, v{r}, v{T+1}")
            A(f"v_fmac_f32 v{r}, v{KF+idx}, v{T+2}")
        A("s_cmp_eq_u32 s37, 0")
        A(f"s_cbranch_scc1 L_{role}_comb")
        A("s_mul_i32 s56, s36, 3"); A("s_add_u32 s56, s56, s37"); A("s_sub_u32 s56, s56, 1"); A("s_lshl_b32 s56, s56, 3"); A("s_add_u32 s56, s56, s3")
        A(f"s_mul_i32 s56, s56, {SLOT}")
        srd(28, 22, 56, SLOT)
        A(f"v_lshlrev_b32 v{T}, 4, v{VLANE}")
        A(f"v_add_u32 v{T+1}, 4096, v{T}")
        A(f"v_lshlrev_b32 v{T+2}, 3, v{VLANE}")
        A(f"v_add_u32 v{T+2}, 8192, v{T+2}")
        for k in range(8):
            r = keep[4*k]
            A(f"buffer_store_dwordx4 v[{r}:{r+3}], v{T+(k//4)}, s[28:31], 0 offen offset:{(k%4)*1024} sc1")
        A(f"buffer_store_dwordx2 v[{M}:{M+1}], v{T+2}, s[28:31], 0 offen sc1")
        A("s_waitcnt vmcnt(0)")
        A("s_barrier")
        stamp(6)
        stamp_out()
        if role=="K":
            A("s_cmp_lg_u32 s3, 0")
            A("s_cbranch_scc1 L_end")
            A("s_mov_b64 exec, 1")
            A(f"v_mov_b32 v{VX}, 0")
            A(f"v_mov_b32 v{VX+1}, s92" if stamps == 2 else f"v_mov_b32 v{VX+1}, 1")
            A(f"global_atomic_add v{VX}, v{VX+1}, s[62:63]")
        A("s_endpgm")
        A(f"L_{role}_comb:")
        if role=="K":
            A("s_cmp_lg_u32 s3, 0")
            A("s_cbranch_scc1 L_nopoll")
            A(f"v_mov_b32 v{VX}, 0")
            A("L_poll:")
            A(f"global_load_dword v{VX+1}, v{VX}, s[62:63] sc1")
            A("s_waitcnt vmcnt(0)")
            A(f"v_readfirstlane_b32 s58, v{VX+1}")
            if stamps == 2:
                A("s_add_u32 s93, s93, 1"); A("s_cmp_gt_u32 s93, 2000"); A("s_cbranch_scc1 L_nopoll")
                A("s_lshr_b32 s58, s58, s91"); A("s_and_b32 s58, s58, 3")
            A("s_cmp_lt_u32 s58, 3")
            A("s_cbranch_scc1 L_poll")
            A("L_nopoll:")
        A("s_barrier")
        stamp(6)
        A("s_mul_i32 s56, s36, 24"); A("s_add_u32 s56, s56, s3")
        A(f"s_mul_i32 s56, s56, {SLOT}")
        srd(28, 22, 56, SLOT*17)
        A(f"v_lshlrev_b32 v{T}, 4, v{VLANE}")
        A(f"v_lshlrev_b32 v{T+2}, 3, v{VLANE}")
        dst = [RA, RB, KF]
        for t in range(3):
            A(f"v_add_u32 v{T+3}, {t*8*SLOT}, v{T}")
            A(f"v_add_u32 v{T+4}, {t*8*SLOT+4096}, v{T}")
            A(f"v_add_u32 v{T+5}, {t*8*SLOT+8192}, v{T+2}")
            A(f"buffer_load_dwordx2 v[{VX+2*t}:{VX+2*t+1}], v{T+5}, s[28:31], 0 offen sc1")
            for k in range(8):
                r = dst[t]+4*k
                A(f"buffer_load_dwordx4 v[{r}:{r+3}], v{T+3+(k//4)}, s[28:31], 0 offen offset:{(k%4)*1024} sc1")
        srd(32, 18, 43, 32768)
        A("s_lshl_b32 s56, s38, 13")
        A(f"v_lshlrev_b32 v{VTID}, 8, v{VL32}")
        A(f"v_lshl_add_u32 v{VTID}, v{VH}, 5, v{VTID}")
        A(f"v_add_u32 v{VTID}, s56, v{VTID}")
        A("s_waitcnt vmcnt(0)")
        A(f"v_max3_f32 v{T}, v{M}, v{VX}, v{VX+2}")
        A(f"v_max_f32 v{T}, v{T}, v{VX+4}")
        ms = [M, VX, VX+2, VX+4]
        for i, m in enumerate(ms):
            A(f"v_sub_f32 v{T+1+i}, v{m}, v{T}")
        for i in range(4):
            A(f"v_mul_f32 v{T+1+i}, s40, v{T+1+i}")
        for i in range(4):
            A(f"v_exp_f32 v{T+1+i}, v{T+1+i}")
        A("s_nop 0")
        A(f"v_mul_f32 v{LT}, v{LT}, v{T+1}")
        for i in range(3):
            A(f"v_fmac_f32 v{LT}, v{VX+2*i+1}, v{T+2+i}")
        A(f"v_rcp_f32 v{T}, v{LT}")
        A("s_nop 0")
        A(f"v_mul_f32 v{T}, 0x58000000, v{T}")
        for i in range(4):
            A(f"v_mul_f32 v{T+1+i}, v{T+1+i}, v{T}")
        for idx, r in enumerate(keep):
            A(f"v_mul_f32 v{r}, v{r}, v{T+1}")
            for t in range(3):
                A(f"v_fmac_f32 v{r}, v{dst[t]+idx}, v{T+2+t}")
        for a in range(2):
            for c in range(4):
                r = 8*th+4*a+c
                A(f"v_cvt_pk_bf16_f32 v{S+8*a+2*c}, v{O+r}, v{O+16+r}")
                A(f"v_cvt_pk_bf16_f32 v{S+8*a+2*c+1}, v{O+32+r}, v{O+48+r}")
            A(f"buffer_store_dwordx4 v[{S+8*a}:{S+8*a+3}], v{VTID}, s[32:35], 0 offen offset:{128*th+64*a}")
            A(f"buffer_store_dwordx4 v[{S+8*a+4}:{S+8*a+7}], v{VTID}, s[32:35], 0 offen offset:{128*th+64*a+16}")
        if stamps:
            A("s_waitcnt vmcnt(0)")
            stamp(7)
            stamp_out(1)
        A("s_endpgm")
    A("L_end:"); A("s_endpgm")
    A('.section .rodata,"a"'); A(".p2align 6"); A(f".amdhsa_kernel {KNAME}")
    A("  .amdhsa_next_free_vgpr 256"); A("  .amdhsa_next_free_sgpr 96"); A("  .amdhsa_accum_offset 256")
    A("  .amdhsa_float_denorm_mode_32 3")
    A("  .amdhsa_group_segment_fixed_size 0"); A("  .amdhsa_kernarg_size 80"); A("  .amdhsa_user_sgpr_count 2")
    A("  .amdhsa_user_sgpr_kernarg_segment_ptr 1"); A("  .amdhsa_system_sgpr_workgroup_id_x 1"); A(".end_amdhsa_kernel")
    open(name, "w").write("\n".join(L) + "\n")

if __name__ == "__main__":
    kw = {}
    for a in sys.argv[2:]:
        if a == "--stamps": kw["stamps"] = 1
        elif a == "--stamps2": kw["stamps"] = 2
        elif a.startswith("--"):
            k, v = a[2:].split("=")
            kw[k] = tuple(int(x) for x in v.split(",")) if "," in v else int(v)
    gen(sys.argv[1], **kw)
```

```python
import sys, struct, math
KNAME = "standalone__kv_cache_quant_int4_int2_kv_with_per_channel_or_per_token_scales__sampling_kernel"
HDR = open("standalone__kv_cache_quant_int4_int2_kv_with_per_channel_or_per_token_scales__sampling.s.ref").read().split("; Override")[0]

def f32bits(x): return struct.unpack("<I", struct.pack("<f", x))[0]

O=0; Q=64; S=96; KF=112; P=144; RA=152; RB=184
M=216; LT=217; LS2=218; NMC=220; MTH=221; ALPHA=222
T=224
VKRD=232; VVRD=233; VWR=234; VCST=235; VOFFA=236; VOFFB=237; VLANE=238; VTID=239; VL32=240; VH=241
VX=242
STAGE=33792; KBYTES=17408
SLOT=8704
C_SCALE = (128 ** -0.5) * math.log2(math.e) * 2.0**49
TH = 8.0 / C_SCALE

def gen(name, nt="nt", stamps=0, D=3, NC=35, DEEP=6, DEEPP=0, PK=1, LAZY=1, SHIFT=1, PF=0, PFAT=5):
    NPB = (128-NC)//3
    assert NC + 3*NPB == 128
    NROW = max(36, (NC+3)//4*4)
    QL=STAGE; KC=2*STAGE+1024; VC=KC+NROW*1024; LDS_TOTAL=KC+max(NROW*1536+1024, 8*SLOT)
    assert LDS_TOTAL <= 163840
    L=[]; A=L.append
    uid=[0]
    def stamp(i):
        if stamps: A(f"s_memrealtime s[{64+2*i}:{65+2*i}]")
    def stamp_out(kind=0):
        if not stamps: return
        if stamps == 2:
            uid[0]+=1; u=uid[0]
            A("s_waitcnt lgkmcnt(0)")
            A("s_cmp_lg_u32 s3, 0"); A(f"s_cbranch_scc1 L_so{u}")
            A("s_and_b32 s56, s36, 7"); A("s_cmp_lg_u32 s56, 3"); A(f"s_cbranch_scc1 L_so{u}")
            A("s_mov_b64 exec, 1")
            A("v_mov_b32 v8, 0")
            def amax(idx, sreg, neg=False):
                if neg:
                    A(f"s_not_b32 s56, {sreg}"); A("v_mov_b32 v9, s56")
                else: A(f"v_mov_b32 v9, {sreg}")
                A(f"global_atomic_umax v8, v9, s[20:21] offset:{4*idx}")
            def asum(idx, sreg):
                A(f"s_sub_u32 s56, {sreg}, s64"); A("v_mov_b32 v9, s56")
                A(f"global_atomic_add v8, v9, s[20:21] offset:{4*idx}")
            amax(0, "s64", True); amax(1, "s64"); asum(2, "s66"); asum(3, "s68")
            if kind == 0:
                amax(4, "s70"); asum(5, "s70"); amax(6, "s76"); asum(7, "s76"); amax(14, "s70", True)
            else:
                amax(8, "s70"); asum(9, "s70"); amax(10, "s76"); asum(11, "s76"); amax(12, "s78"); asum(13, "s78")
            A(f"L_so{u}:")
            return
        A("s_waitcnt lgkmcnt(0)")
        A("s_lshl_b32 s56, s2, 3"); A("s_add_u32 s56, s56, s3"); A("s_lshl_b32 s56, s56, 6"); A("s_add_u32 s56, s56, 0x4000000")
        A("s_add_u32 s28, s22, s56"); A("s_addc_u32 s29, s23, 0"); A("s_mov_b32 s30, 64"); A("s_mov_b32 s31, 0x20000")
        A("s_mov_b64 exec, 1")
        for i in range(8):
            A(f"v_mov_b32 v{i}, s{64+2*i}")
        A("v_mov_b32 v8, 0"); A("v_mov_b32 v9, s37")
        A("buffer_store_dwordx4 v[0:3], v8, s[28:31], 0 offen")
        A("buffer_store_dwordx4 v[4:7], v8, s[28:31], 0 offen offset:16")
        A("buffer_store_dword v9, v8, s[28:31], 0 offen offset:32")
    A(HDR.rstrip())
    A(f"; @launch grid=(256,1,1) block=(512,1,1) lds={LDS_TOTAL}")
    A('.amdgcn_target "amdgcn-amd-amdhsa--gfx950"')
    A(".text"); A(f".globl {KNAME}"); A(".p2align 8"); A(f".type {KNAME},@function"); A(f"{KNAME}:")
    A("s_cmp_ge_u32 s2, 256"); A("s_cbranch_scc1 L_end")
    for i in range(8): stamp(i)
    A("s_load_dwordx16 s[4:19], s[0:1], 0")
    A("s_load_dwordx4 s[20:23], s[0:1], 64")
    A(f"v_lshrrev_b32 v{T}, 6, v0")
    A(f"v_and_b32 v{VLANE}, 63, v0")
    A(f"v_mov_b32 v{VTID}, v0")
    A(f"v_readfirstlane_b32 s3, v{T}")
    A(f"v_and_b32 v{VL32}, 31, v0")
    A(f"v_bfe_u32 v{VH}, v0, 5, 1")
    def codepf(dst=VX):
        A(f"v_lshlrev_b32 v{VX+4}, 4, v{VTID}")
        for i in range(3):
            A(f"v_min_u32 v{VX+5}, s90, v{VX+4}")
            A(f"global_load_dwordx4 v[{dst}:{dst+3}], v{VX+5}, s[88:89]")
            if i < 2: A(f"v_add_u32 v{VX+4}, 8192, v{VX+4}")
    if PF:
        A("s_getpc_b64 s[88:89]")
        A("L_pc:")
        A(f"s_sub_u32 s88, s88, L_pc-{KNAME}")
        A("s_subb_u32 s89, s89, 0")
        A(f"s_mov_b32 s90, (L_end-{KNAME}-16)&0xfffffff0")
        if PF & 1: codepf(S)
    A("s_lshr_b32 s36, s2, 2")
    A("s_lshr_b32 s37, s2, 3")
    A("s_add_u32 s37, s37, s2")
    A("s_and_b32 s37, s37, 3")
    A("s_and_b32 s38, s3, 3")
    A("s_lshr_b32 s39, s3, 2")
    A(f"s_mul_i32 s59, s37, {NPB}")
    A(f"s_add_u32 s59, s59, {NC-NPB}")
    A("s_cmp_eq_u32 s37, 0")
    A("s_cselect_b32 s59, 0, s59")
    A(f"s_movk_i32 s42, {NPB}")
    A(f"s_cselect_b32 s42, {NC}, s42")
    A(f"s_movk_i32 s61, {DEEPP}")
    A(f"s_cselect_b32 s61, {DEEP}, s61")
    A("s_lshl_b32 s58, s36, 22")
    A("s_lshl_b32 s60, s59, 15")
    A("s_add_u32 s58, s58, s60")
    A("s_lshl_b32 s60, s38, 13")
    A("s_movk_i32 s80, 272")
    A("s_mov_b64 vcc, -1")
    A("s_cmp_eq_u32 s39, 0")
    A("s_cbranch_scc0 L_v0")
    A(f"v_lshlrev_b32 v{VOFFA}, 4, v{VLANE}")
    A("s_branch L_v1")
    A("L_v0:")
    A(f"v_lshlrev_b32 v{VOFFA}, 4, v{VL32}")
    A(f"v_lshl_add_u32 v{VOFFA}, v{VH}, 11, v{VOFFA}")
    A("L_v1:")
    A(f"v_add_u32 v{VOFFA}, s60, v{VOFFA}")
    A(f"v_add_u32 v{VOFFB}, 4096, v{VOFFA}")
    A("s_waitcnt lgkmcnt(0)")
    A("s_cmp_eq_u32 s39, 0")
    A("s_cselect_b32 s24, s6, s8"); A("s_cselect_b32 s25, s7, s9")
    A("s_add_u32 s24, s24, s58"); A("s_addc_u32 s25, s25, 0")
    A("s_lshl_b32 s26, s42, 15"); A("s_mov_b32 s27, 0x20000")
    def srd(d, p, off, size):
        A(f"s_add_u32 s{d}, s{p}, s{off}"); A(f"s_addc_u32 s{d+1}, s{p+1}, 0")
        A(f"s_mov_b32 s{d+2}, {size}"); A(f"s_mov_b32 s{d+3}, 0x20000")
    def rawload(role, Rr, n, wait=True):
        step = 1024 if role=="K" else 512
        vo = VOFFA if n<4 else VOFFB
        if wait:
            uid[0]+=1
            A(f"s_cbranch_vccz L_w{uid[0]}")
            A(f"s_waitcnt vmcnt({D-1})")
            A(f"L_w{uid[0]}:")
        A(f"buffer_load_dwordx4 v[{Rr+4*n}:{Rr+4*n+3}], v{vo}, s[24:27], 0 offen offset:{(n%4)*step} {nt}")
        if n==3: A(f"v_add_u32 v{VOFFA}, 0x8000, v{VOFFA}")
        if n==7: A(f"v_add_u32 v{VOFFB}, 0x8000, v{VOFFB}")

    def kconst(b):
        for i in range(4):
            A(f"v_lshlrev_b32 v{T}, 16, v{b+i}")
            A(f"v_and_b32 v{T+1}, 0xffff0000, v{b+i}")
            A(f"v_lshlrev_b32 v{T+2}, 16, v{b+4+i}")
            A(f"v_and_b32 v{T+3}, 0xffff0000, v{b+4+i}")
            A(f"v_mul_f32 v{S+2*i}, 0x71800000, v{T}")
            A(f"v_mul_f32 v{S+2*i+1}, 0x71800000, v{T+1}")
            A(f"v_mul_f32 v{T+2}, v{T+2}, v{T}")
            A(f"v_mul_f32 v{T+3}, v{T+3}, v{T+1}")
            A(f"v_mul_f32 v{S+8+2*i}, 0xa7000000, v{T+2}")
            A(f"v_mul_f32 v{S+8+2*i+1}, 0xa7000000, v{T+3}")
    def kwrite(o):
        A(f"ds_write_b128 v{VX}, v[{S}:{S+3}] offset:{o}")
        A(f"ds_write_b128 v{VX}, v[{S+4}:{S+7}] offset:{o+16}")
        A(f"ds_write_b128 v{VX}, v[{S+8}:{S+11}] offset:{o+512}")
        A(f"ds_write_b128 v{VX}, v[{S+12}:{S+15}] offset:{o+528}")
    def vconst(b, o):
        for i in range(2):
            A(f"v_lshlrev_b32 v{T+4}, 16, v{b+8+i}")
            A(f"v_and_b32 v{T+1}, 0xffff0000, v{b+8+i}")
            A(f"v_lshlrev_b32 v{T+2}, 16, v{b+10+i}")
            A(f"v_and_b32 v{T+3}, 0xffff0000, v{b+10+i}")
            A(f"v_mul_f32 v{P+2*i}, 0x71800000, v{T+4}")
            A(f"v_mul_f32 v{P+2*i+1}, 0x71800000, v{T+1}")
            A(f"v_mul_f32 v{T+2}, v{T+2}, v{T+4}")
            A(f"v_mul_f32 v{T+3}, v{T+3}, v{T+1}")
            A(f"v_mul_f32 v{P+4+2*i}, 0xa7000000, v{T+2}")
            A(f"v_mul_f32 v{P+4+2*i+1}, 0xa7000000, v{T+3}")
        A(f"ds_write_b128 v{VX+1}, v[{P}:{P+3}] offset:{o}")
        A(f"ds_write_b128 v{VX+1}, v[{P+4}:{P+7}] offset:{o+16}")

    def cst_reads(role):
        if role=="K":
            A(f"ds_read_b128 v[{S}:{S+3}], v{VCST}")
            A(f"ds_read_b128 v[{S+4}:{S+7}], v{VCST} offset:512")
            A(f"v_add_u32 v{VCST}, 1024, v{VCST}")
            return 2
        else:
            A(f"ds_read_b128 v[{S}:{S+3}], v{VCST}")
            A(f"ds_read_b128 v[{S+4}:{S+7}], v{VCST} offset:16")
            A(f"ds_read_b128 v[{S+8}:{S+11}], v{VCST} offset:64")
            A(f"ds_read_b128 v[{S+12}:{S+15}], v{VCST} offset:80")
            A(f"v_add_u32 v{VCST}, 512, v{VCST}")
            return 4

    def produce(role, Rr, b, pts, vw):
        kb = b*STAGE; vb = kb + KBYTES
        A(f"s_waitcnt vmcnt({vw}) lgkmcnt(0)")
        for p in range(4):
            for (Rl, n) in pts.get(p, []): rawload(role, Rl, n)
            if role=="K":
                for n in (2*p, 2*p+1):
                    r = Rr+4*n
                    if PK:
                        A(f"v_pk_fma_f32 v[{r}:{r+1}], v[{r}:{r+1}], v[{S}:{S+1}], v[{S+4}:{S+5}]")
                        A(f"v_pk_fma_f32 v[{r+2}:{r+3}], v[{r+2}:{r+3}], v[{S+2}:{S+3}], v[{S+6}:{S+7}]")
                    else:
                        for j in range(4):
                            A(f"v_fma_f32 v{r+j}, v{r+j}, v{S+j}, v{S+4+j}")
                    A(f"v_cvt_pk_bf16_f32 v{KF+2*n}, v{r}, v{r+1}")
                    A(f"v_cvt_pk_bf16_f32 v{KF+2*n+1}, v{r+2}, v{r+3}")
                    A(f"ds_write_b64 v{VWR}, v[{KF+2*n}:{KF+2*n+1}] offset:{kb+n*544}")
            else:
                for i in (2*p, 2*p+1):
                    r = Rr+4*i
                    cs = S + (i//4)*8 + i%4; cc = cs+4
                    if PK:
                        x = cs & 1; c0 = cs & ~1; c1 = cc & ~1
                        for jj in (0, 2):
                            A(f"v_pk_fma_f32 v[{r+jj}:{r+jj+1}], v[{r+jj}:{r+jj+1}], v[{c0}:{c0+1}], v[{c1}:{c1+1}] op_sel:[0,{x},{x}] op_sel_hi:[1,{x},{x}]")
                    else:
                        for j in range(4):
                            A(f"v_fma_f32 v{r+j}, v{r+j}, v{cs}, v{cc}")
                for j in range(4):
                    A(f"v_cvt_pk_bf16_f32 v{KF+4*j+p}, v{Rr+8*p+j}, v{Rr+8*p+4+j}")
        if role=="V":
            for j in range(4):
                A(f"ds_write_b128 v{VWR}, v[{KF+4*j}:{KF+4*j+3}] offset:{vb+j*1024}")
        for (Rl, n) in pts.get(4, []): rawload(role, Rl, n)

    def consume(role, b, pts):
        kb = b*STAGE; vb = kb + KBYTES
        def pt(k):
            for (Rl, n) in pts.get(k, []): rawload(role, Rl, n)
        for s in range(8):
            A(f"ds_read_b128 v[{KF+4*s}:{KF+4*s+3}], v{VKRD} offset:{kb+s*32}")
        pt(0)
        for s in range(8):
            A(f"s_waitcnt lgkmcnt({7-s})")
            c = "0" if s==0 else f"v[{S}:{S+15}]"
            A(f"v_mfma_f32_32x32x16_bf16 v[{S}:{S+15}], v[{KF+4*s}:{KF+4*s+3}], v[{Q+4*s}:{Q+4*s+3}], {c}")
        for x in range(8):
            A(f"ds_read_b128 v[{KF+4*x}:{KF+4*x+3}], v{VVRD} offset:{vb+x*1024}")
        pt(1)
        A("s_nop 3")
        A(f"v_max3_f32 v{T}, v{S}, v{S+1}, v{S+2}")
        A(f"v_max3_f32 v{T+1}, v{S+3}, v{S+4}, v{S+5}")
        A(f"v_max3_f32 v{T+2}, v{S+6}, v{S+7}, v{S+8}")
        A(f"v_max3_f32 v{T+3}, v{S+9}, v{S+10}, v{S+11}")
        A(f"v_max3_f32 v{T}, v{T}, v{S+12}, v{S+13}")
        A(f"v_max3_f32 v{T+1}, v{T+1}, v{S+14}, v{S+15}")
        A(f"v_max3_f32 v{T}, v{T}, v{T+2}, v{T+3}")
        uid[0]+=1; u=uid[0]
        if LAZY:
            A(f"v_max_f32 v{T}, v{T}, v{T+1}")
            A(f"v_cmp_gt_f32 s[82:83], v{T}, v{MTH}")
            A("s_nop 0")
            A("s_cmp_eq_u64 s[82:83], 0")
            A(f"s_cbranch_scc1 L_nr{u}")
            A(f"v_max_f32 v{T}, v{T}, v{M}")
        else:
            A(f"v_max3_f32 v{T}, v{T}, v{T+1}, v{M}")
        A(f"v_mov_b32 v{T+1}, v{T}")
        A("s_nop 1")
        A(f"v_permlane32_swap_b32 v{T}, v{T+1}")
        A("s_nop 0")
        A(f"v_max_f32 v{T}, v{T}, v{T+1}")
        A(f"v_sub_f32 v{T+2}, v{M}, v{T}")
        A(f"v_mul_f32 v{T+2}, s40, v{T+2}")
        A(f"v_mul_f32 v{NMC}, s44, v{T}")
        A(f"v_exp_f32 v{ALPHA}, v{T+2}")
        A(f"v_mov_b32 v{M}, v{T}")
        A(f"v_add_f32 v{MTH}, s45, v{T}")
        A(f"v_pk_mul_f32 v[{LS2}:{LS2+1}], v[{LS2}:{LS2+1}], v[{ALPHA}:{ALPHA+1}] op_sel_hi:[1,0]")
        for i in range(0, 64, 2):
            A(f"v_pk_mul_f32 v[{O+i}:{O+i+1}], v[{O+i}:{O+i+1}], v[{ALPHA}:{ALPHA+1}] op_sel_hi:[1,0]")
        if LAZY: A(f"L_nr{u}:")
        if PK:
            for r in range(0, 16, 2):
                A(f"v_pk_fma_f32 v[{S+r}:{S+r+1}], v[{S+r}:{S+r+1}], s[40:41], v[{NMC}:{NMC+1}] op_sel_hi:[1,1,0]")
        else:
            for r in range(16):
                A(f"v_fma_f32 v{S+r}, v{S+r}, s40, v{NMC}")
        for r in range(16):
            A(f"v_exp_f32 v{S+r}, v{S+r}")
        pt(2)
        for k in range(8):
            A(f"v_cvt_pk_bf16_f32 v{P+k}, v{S+2*k}, v{S+2*k+1}")
        for i in range(4):
            A(f"v_pk_add_f32 v[{T+2*i}:{T+2*i+1}], v[{S+4*i}:{S+4*i+1}], v[{S+4*i+2}:{S+4*i+3}]")
        A(f"v_pk_add_f32 v[{T}:{T+1}], v[{T}:{T+1}], v[{T+2}:{T+3}]")
        A(f"v_pk_add_f32 v[{T+4}:{T+5}], v[{T+4}:{T+5}], v[{T+6}:{T+7}]")
        nc = cst_reads(role)
        pt(3)
        A(f"s_waitcnt lgkmcnt({nc})")
        for s in range(2):
            for j in range(4):
                x = s*4+j
                A(f"v_mfma_f32_32x32x16_bf16 v[{O+16*j}:{O+16*j+15}], v[{KF+4*x}:{KF+4*x+3}], v[{P+4*s}:{P+4*s+3}], v[{O+16*j}:{O+16*j+15}]")
            if s==0:
                A(f"v_pk_add_f32 v[{T}:{T+1}], v[{T}:{T+1}], v[{T+4}:{T+5}]")
                A(f"v_pk_add_f32 v[{LS2}:{LS2+1}], v[{LS2}:{LS2+1}], v[{T}:{T+1}]")
        pt(4)

    def bar():
        A("s_waitcnt lgkmcnt(0)"); A("s_barrier")
    def setdeep():
        if PF & 2:
            uid[0]+=1
            A(f"s_cmp_lg_u32 s42, {PFAT}")
            A(f"s_cbranch_scc1 L_pf{uid[0]}")
            codepf()
            A(f"L_pf{uid[0]}:")
        A("s_cmp_gt_u32 s42, s61")
        A("s_cselect_b64 vcc, -1, 0")

    A("s_cmp_eq_u32 s39, 0")
    A("s_cbranch_scc0 L_V_entry")
    for role in ("K","V"):
        th = 0 if role=="K" else 1
        shifted = (role=="V" and SHIFT)
        A(f"L_{role}_entry:")
        for n in range(8): rawload(role, RA, n, False)
        A("s_lshl_b32 s43, s36, 15")
        A("s_lshl_b32 s57, s36, 14")
        srd(28, 10, 43, 32768)
        srd(32, 12, 43, 32768)
        srd(84, 14, 57, 16384)
        srd(48, 16, 57, 16384)
        srd(52, 4, 43, 32768)
        A("s_lshl_b32 s60, s59, 8")
        A(f"v_lshlrev_b32 v{T+4}, 4, v{VTID}")
        A(f"v_add_u32 v{T+4}, s60, v{T+4}")
        A("s_lshl_b32 s60, s59, 7")
        A(f"v_lshlrev_b32 v{T+5}, 3, v{VTID}")
        A(f"v_add_u32 v{T+5}, s60, v{T+5}")
        b = KF
        A(f"buffer_load_dwordx4 v[{b}:{b+3}], v{T+4}, s[28:31], 0 offen {nt}")
        A(f"buffer_load_dwordx4 v[{b+4}:{b+7}], v{T+4}, s[32:35], 0 offen {nt}")
        A(f"buffer_load_dwordx2 v[{b+8}:{b+9}], v{T+5}, s[84:87], 0 offen {nt}")
        A(f"buffer_load_dwordx2 v[{b+10}:{b+11}], v{T+5}, s[48:51], 0 offen {nt}")
        if role=="K":
            A(f"s_cmp_ge_u32 s3, {(NROW-32)//4}")
            A("s_cbranch_scc1 L_skip_l1")
            A(f"v_add_u32 v{T+4}, 8192, v{T+4}")
            A(f"v_add_u32 v{T+5}, 4096, v{T+5}")
            b = KF+12
            A(f"buffer_load_dwordx4 v[{b}:{b+3}], v{T+4}, s[28:31], 0 offen {nt}")
            A(f"buffer_load_dwordx4 v[{b+4}:{b+7}], v{T+4}, s[32:35], 0 offen {nt}")
            A(f"buffer_load_dwordx2 v[{b+8}:{b+9}], v{T+5}, s[84:87], 0 offen {nt}")
            A(f"buffer_load_dwordx2 v[{b+10}:{b+11}], v{T+5}, s[48:51], 0 offen {nt}")
            A("L_skip_l1:")
        A(f"v_lshlrev_b32 v{T+2}, 4, v{VLANE}")
        A("s_lshl_b32 s60, s3, 12")
        A(f"v_add_u32 v{T+2}, s60, v{T+2}")
        for n in range(4):
            A(f"buffer_load_dwordx4 v[{Q+4*n}:{Q+4*n+3}], v{T+2}, s[52:55], 0 offen offset:{n*1024} {nt}")
        NB0 = 4
        for n in range(NB0): rawload(role, RB, n, False)
        stamp(4)
        A(f"s_mov_b32 s40, {f32bits(C_SCALE):#x}")
        A(f"s_mov_b32 s41, {f32bits(C_SCALE):#x}")
        A(f"s_mov_b32 s44, {f32bits(-C_SCALE):#x}")
        A(f"s_mov_b32 s45, {f32bits(TH):#x}")
        if stamps == 2:
            A("s_lshr_b32 s56, s36, 4"); A("s_lshl_b32 s56, s56, 2"); A("s_add_u32 s56, s56, 240")
            A("s_and_b32 s91, s36, 15"); A("s_lshl_b32 s91, s91, 1"); A("s_lshl_b32 s92, 1, s91"); A("s_mov_b32 s93, 0")
        else:
            A("s_lshl_b32 s56, s36, 2")
        A("s_add_u32 s62, s20, s56"); A("s_addc_u32 s63, s21, 0")
        A("s_lshl_b32 s60, s39, 5")
        A(f"v_add_u32 v{T+3}, s60, v{VL32}")
        A(f"v_mul_lo_u32 v{VKRD}, v{T+3}, s80")
        A(f"v_lshl_add_u32 v{VKRD}, v{VH}, 4, v{VKRD}")
        A("s_lshl_b32 s60, s39, 13")
        A(f"v_lshlrev_b32 v{VVRD}, 4, v{VLANE}")
        A(f"v_add_u32 v{VVRD}, s60, v{VVRD}")
        if role=="K":
            A("s_lshl_b32 s60, s38, 4")
            A(f"v_add_u32 v{T+3}, s60, v{VH}")
            A(f"v_mul_lo_u32 v{VWR}, v{T+3}, s80")
            A(f"v_lshl_add_u32 v{VWR}, v{VL32}, 3, v{VWR}")
            A(f"v_lshlrev_b32 v{VCST}, 4, v{VL32}")
            A(f"v_add_u32 v{VCST}, {KC}, v{VCST}")
        else:
            A("s_lshl_b32 s60, s38, 12")
            A(f"v_lshlrev_b32 v{VWR}, 4, v{VLANE}")
            A(f"v_add_u32 v{VWR}, s60, v{VWR}")
            A("s_lshl_b32 s60, s38, 7")
            A(f"s_add_u32 s60, s60, {VC}")
            A(f"v_lshlrev_b32 v{VCST}, 5, v{VH}")
            A(f"v_add_u32 v{VCST}, s60, v{VCST}")
        for i in range(64): A(f"v_mov_b32 v{O+i}, 0")
        A(f"v_mov_b32 v{M}, {f32bits(-3.0e38):#x}")
        A(f"v_mov_b32 v{MTH}, {f32bits(-3.0e38):#x}")
        A(f"v_mov_b32 v{NMC}, 0")
        A(f"v_mov_b32 v{LS2}, 0"); A(f"v_mov_b32 v{LS2+1}, 0")
        A(f"v_lshrrev_b32 v{T}, 4, v{VTID}")
        A(f"v_and_b32 v{T+1}, 15, v{VTID}")
        A(f"v_lshlrev_b32 v{VX}, 10, v{T}")
        A(f"v_lshl_add_u32 v{VX}, v{T+1}, 5, v{VX}")
        A(f"v_add_u32 v{VX}, {KC}, v{VX}")
        A(f"v_lshlrev_b32 v{VX+1}, 5, v{VTID}")
        A(f"v_add_u32 v{VX+1}, {VC}, v{VX+1}")
        A(f"v_lshrrev_b32 v{T}, 4, v{VLANE}")
        A("s_lshl_b32 s60, s3, 4")
        A(f"v_add_u32 v{T}, s60, v{T}")
        A(f"v_mul_lo_u32 v{VX+2}, v{T}, s80")
        A(f"v_lshl_add_u32 v{VX+2}, v{T+1}, 4, v{VX+2}")
        A(f"v_add_u32 v{VX+2}, {QL}, v{VX+2}")
        A("s_lshl_b32 s60, s38, 5")
        A(f"v_add_u32 v{T}, s60, v{VL32}")
        A(f"v_mul_lo_u32 v{VX+3}, v{T}, s80")
        A(f"v_lshl_add_u32 v{VX+3}, v{VH}, 4, v{VX+3}")
        A(f"v_add_u32 v{VX+3}, {QL}, v{VX+3}")
        A(f"s_waitcnt vmcnt({NB0})")
        stamp(5)
        kconst(KF); kwrite(0); rawload(role, RB, 4); vconst(KF, 0)
        for n in range(4):
            A(f"ds_write_b128 v{VX+2}, v[{Q+4*n}:{Q+4*n+3}] offset:{n*4*272}")
        if role=="K":
            A(f"s_cmp_ge_u32 s3, {(NROW-32)//4}")
            A("s_cbranch_scc1 L_skip_p1")
            kconst(KF+12); kwrite(32768); vconst(KF+12, 16384)
            A("L_skip_p1:")
        rawload(role, RB, 5)
        bar()
        stamp(1)
        for s in range(8):
            A(f"ds_read_b128 v[{Q+4*s}:{Q+4*s+3}], v{VX+3} offset:{s*32}")
        cst_reads(role)
        produce(role, RA, 0, {1:[(RB,6)], 3:[(RB,7)]}, 6)
        if shifted:
            cst_reads(role)
            for n in range(4): rawload(role, RA, n)
        bar()
        stamp(2)
        A(f"L_{role}_loop:")
        for par in range(2):
            Rc = (RA, RB)[par]
            Rn = (RB, RA)[par]
            setdeep()
            if not shifted:
                consume(role, par, {0:[(Rc,0)], 1:[(Rc,1)], 2:[(Rc,2)], 3:[(Rc,3)], 4:[(Rc,4)]})
                A("s_sub_u32 s42, s42, 1")
                A("s_cmp_eq_u32 s42, 0")
                A(f"s_cbranch_scc1 L_{role}_epi")
                produce(role, Rn, 1-par, {1:[(Rc,5)], 3:[(Rc,6)], 4:[(Rc,7)]}, 5)
                bar()
            else:
                A("s_cmp_eq_u32 s42, 1")
                A(f"s_cbranch_scc1 L_{role}_last{par}")
                produce(role, Rn, 1-par, {0:[(Rc,4)], 2:[(Rc,5)], 4:[(Rc,6)]}, 4)
                consume(role, par, {0:[(Rc,7)], 1:[(Rn,0)], 2:[(Rn,1)], 3:[(Rn,2)], 4:[(Rn,3)]})
                A("s_sub_u32 s42, s42, 1")
                bar()
        A(f"s_branch L_{role}_loop")
        if shifted:
            for par in range(2):
                A(f"L_{role}_last{par}:")
                A("s_waitcnt lgkmcnt(0)")
                consume(role, par, {})
                if par==0: A(f"s_branch L_{role}_epi")
        A(f"L_{role}_epi:")
        A("s_waitcnt vmcnt(0) lgkmcnt(0)")
        stamp(3)
        A(f"v_add_f32 v{LT}, v{LS2}, v{LS2+1}")
        A(f"v_mov_b32 v{T}, v{LT}")
        A("s_nop 1")
        A(f"v_permlane32_swap_b32 v{LT}, v{T}")
        A("s_nop 0")
        A(f"v_add_f32 v{LT}, v{LT}, v{T}")
        A(f"s_mul_i32 s56, s3, {SLOT}"); A(f"s_add_u32 s56, s56, {KC}")
        A("s_xor_b32 s58, s3, 4")
        A(f"s_mul_i32 s57, s58, {SLOT}"); A(f"s_add_u32 s57, s57, {KC}")
        A(f"v_lshlrev_b32 v{T+1}, 4, v{VLANE}")
        A(f"v_add_u32 v{T+2}, s56, v{T+1}")
        A(f"v_add_u32 v{T+3}, s57, v{T+1}")
        A(f"v_lshlrev_b32 v{T+1}, 3, v{VLANE}")
        A(f"v_add_u32 v{T+4}, s56, v{T+1}")
        A(f"v_add_u32 v{T+5}, s57, v{T+1}")
        A("s_nop 7")
        k=0
        for j in range(4):
            for hh in range(2):
                r = O+16*j+8*(1-th)+4*hh
                A(f"ds_write_b128 v{T+2}, v[{r}:{r+3}] offset:{k*1024}")
                k+=1
        A(f"ds_write_b64 v{T+4}, v[{M}:{M+1}] offset:8192")
        A("s_waitcnt lgkmcnt(0)"); A("s_barrier")
        for k in range(8):
            A(f"ds_read_b128 v[{KF+4*k}:{KF+4*k+3}], v{T+3} offset:{k*1024}")
        A(f"ds_read_b64 v[{VX+4}:{VX+5}], v{T+5} offset:8192")
        A("s_waitcnt lgkmcnt(0)")
        A(f"v_max_f32 v{T}, v{M}, v{VX+4}")
        A(f"v_sub_f32 v{T+1}, v{M}, v{T}")
        A(f"v_sub_f32 v{T+2}, v{VX+4}, v{T}")
        A(f"v_mul_f32 v{T+1}, s40, v{T+1}")
        A(f"v_mul_f32 v{T+2}, s40, v{T+2}")
        A(f"v_exp_f32 v{T+1}, v{T+1}")
        A(f"v_exp_f32 v{T+2}, v{T+2}")
        A(f"v_mov_b32 v{M}, v{T}")
        A(f"v_mul_f32 v{LT}, v{LT}, v{T+1}")
        A(f"v_fmac_f32 v{LT}, v{VX+5}, v{T+2}")
        keep = [O+16*j+8*th+4*hh+c for j in range(4) for hh in range(2) for c in range(4)]
        for idx, r in enumerate(keep):
            A(f"v_mul_f32 v{r}, v{r}, v{T+1}")
            A(f"v_fmac_f32 v{r}, v{KF+idx}, v{T+2}")
        A("s_cmp_eq_u32 s37, 0")
        A(f"s_cbranch_scc1 L_{role}_comb")
        A("s_mul_i32 s56, s36, 3"); A("s_add_u32 s56, s56, s37"); A("s_sub_u32 s56, s56, 1"); A("s_lshl_b32 s56, s56, 3"); A("s_add_u32 s56, s56, s3")
        A(f"s_mul_i32 s56, s56, {SLOT}")
        srd(28, 22, 56, SLOT)
        A(f"v_lshlrev_b32 v{T}, 4, v{VLANE}")
        A(f"v_add_u32 v{T+1}, 4096, v{T}")
        A(f"v_lshlrev_b32 v{T+2}, 3, v{VLANE}")
        A(f"v_add_u32 v{T+2}, 8192, v{T+2}")
        for k in range(8):
            r = keep[4*k]
            A(f"buffer_store_dwordx4 v[{r}:{r+3}], v{T+(k//4)}, s[28:31], 0 offen offset:{(k%4)*1024} sc1")
        A(f"buffer_store_dwordx2 v[{M}:{M+1}], v{T+2}, s[28:31], 0 offen sc1")
        A("s_waitcnt vmcnt(0)")
        A("s_barrier")
        stamp(6)
        if stamps != 2: stamp_out()
        if role=="K":
            A("s_cmp_lg_u32 s3, 0")
            A("s_cbranch_scc1 L_end")
            A("s_mov_b64 exec, 1")
            A(f"v_mov_b32 v{VX}, 0")
            A(f"v_mov_b32 v{VX+1}, s92" if stamps == 2 else f"v_mov_b32 v{VX+1}, 1")
            A(f"global_atomic_add v{VX}, v{VX+1}, s[62:63]")
            if stamps == 2:
                A("s_sleep 100"); A("s_sleep 100"); A("s_sleep 100")
                stamp_out()
        A("s_endpgm")
        A(f"L_{role}_comb:")
        if role=="K":
            A("s_cmp_lg_u32 s3, 0")
            A("s_cbranch_scc1 L_nopoll")
            A(f"v_mov_b32 v{VX}, 0")
            A("L_poll:")
            A(f"global_load_dword v{VX+1}, v{VX}, s[62:63] sc1")
            A("s_waitcnt vmcnt(0)")
            A(f"v_readfirstlane_b32 s58, v{VX+1}")
            if stamps == 2:
                A("s_add_u32 s93, s93, 1"); A("s_cmp_gt_u32 s93, 2000"); A("s_cbranch_scc1 L_nopoll")
                A("s_lshr_b32 s58, s58, s91"); A("s_and_b32 s58, s58, 3")
            A("s_cmp_lt_u32 s58, 3")
            A("s_cbranch_scc1 L_poll")
            A("L_nopoll:")
        A("s_barrier")
        stamp(6)
        A("s_mul_i32 s56, s36, 24"); A("s_add_u32 s56, s56, s3")
        A(f"s_mul_i32 s56, s56, {SLOT}")
        srd(28, 22, 56, SLOT*17)
        A(f"v_lshlrev_b32 v{T}, 4, v{VLANE}")
        A(f"v_lshlrev_b32 v{T+2}, 3, v{VLANE}")
        dst = [RA, RB, KF]
        for t in range(3):
            A(f"v_add_u32 v{T+3}, {t*8*SLOT}, v{T}")
            A(f"v_add_u32 v{T+4}, {t*8*SLOT+4096}, v{T}")
            A(f"v_add_u32 v{T+5}, {t*8*SLOT+8192}, v{T+2}")
            A(f"buffer_load_dwordx2 v[{VX+2*t}:{VX+2*t+1}], v{T+5}, s[28:31], 0 offen sc1")
            for k in range(8):
                r = dst[t]+4*k
                A(f"buffer_load_dwordx4 v[{r}:{r+3}], v{T+3+(k//4)}, s[28:31], 0 offen offset:{(k%4)*1024} sc1")
        srd(32, 18, 43, 32768)
        A("s_lshl_b32 s56, s38, 13")
        A(f"v_lshlrev_b32 v{VTID}, 8, v{VL32}")
        A(f"v_lshl_add_u32 v{VTID}, v{VH}, 5, v{VTID}")
        A(f"v_add_u32 v{VTID}, s56, v{VTID}")
        A("s_waitcnt vmcnt(0)")
        A(f"v_max3_f32 v{T}, v{M}, v{VX}, v{VX+2}")
        A(f"v_max_f32 v{T}, v{T}, v{VX+4}")
        ms = [M, VX, VX+2, VX+4]
        for i, m in enumerate(ms):
            A(f"v_sub_f32 v{T+1+i}, v{m}, v{T}")
        for i in range(4):
            A(f"v_mul_f32 v{T+1+i}, s40, v{T+1+i}")
        for i in range(4):
            A(f"v_exp_f32 v{T+1+i}, v{T+1+i}")
        A("s_nop 0")
        A(f"v_mul_f32 v{LT}, v{LT}, v{T+1}")
        for i in range(3):
            A(f"v_fmac_f32 v{LT}, v{VX+2*i+1}, v{T+2+i}")
        A(f"v_rcp_f32 v{T}, v{LT}")
        A("s_nop 0")
        A(f"v_mul_f32 v{T}, 0x58000000, v{T}")
        for i in range(4):
            A(f"v_mul_f32 v{T+1+i}, v{T+1+i}, v{T}")
        for idx, r in enumerate(keep):
            A(f"v_mul_f32 v{r}, v{r}, v{T+1}")
            for t in range(3):
                A(f"v_fmac_f32 v{r}, v{dst[t]+idx}, v{T+2+t}")
        for a in range(2):
            for c in range(4):
                r = 8*th+4*a+c
                A(f"v_cvt_pk_bf16_f32 v{S+8*a+2*c}, v{O+r}, v{O+16+r}")
                A(f"v_cvt_pk_bf16_f32 v{S+8*a+2*c+1}, v{O+32+r}, v{O+48+r}")
            A(f"buffer_store_dwordx4 v[{S+8*a}:{S+8*a+3}], v{VTID}, s[32:35], 0 offen offset:{128*th+64*a}")
            A(f"buffer_store_dwordx4 v[{S+8*a+4}:{S+8*a+7}], v{VTID}, s[32:35], 0 offen offset:{128*th+64*a+16}")
        if stamps:
            A("s_waitcnt vmcnt(0)")
            stamp(7)
            stamp_out(1)
        A("s_endpgm")
    A("L_end:"); A("s_endpgm")
    A('.section .rodata,"a"'); A(".p2align 6"); A(f".amdhsa_kernel {KNAME}")
    A("  .amdhsa_next_free_vgpr 256"); A("  .amdhsa_next_free_sgpr 96"); A("  .amdhsa_accum_offset 256")
    A("  .amdhsa_float_denorm_mode_32 3")
    A("  .amdhsa_group_segment_fixed_size 0"); A("  .amdhsa_kernarg_size 80"); A("  .amdhsa_user_sgpr_count 2")
    A("  .amdhsa_user_sgpr_kernarg_segment_ptr 1"); A("  .amdhsa_system_sgpr_workgroup_id_x 1"); A(".end_amdhsa_kernel")
    open(name, "w").write("\n".join(L) + "\n")

if __name__ == "__main__":
    kw = {}
    for a in sys.argv[2:]:
        if a == "--stamps": kw["stamps"] = 1
        elif a == "--stamps2": kw["stamps"] = 2
        elif a.startswith("--"):
            k, v = a[2:].split("=")
            kw[k] = tuple(int(x) for x in v.split(",")) if "," in v else int(v)
    gen(sys.argv[1], **kw)
```

```python
import sys, struct, math
KNAME = "standalone__kv_cache_quant_int4_int2_kv_with_per_channel_or_per_token_scales__sampling_kernel"
HDR = open("standalone__kv_cache_quant_int4_int2_kv_with_per_channel_or_per_token_scales__sampling.s.ref").read().split("; Override")[0]

def f32bits(x): return struct.unpack("<I", struct.pack("<f", x))[0]

O=0; Q=64; S=96; KF=112; P=144; RA=152; RB=184
M=216; LT=217; LS2=218; NMC=220; MTH=221; ALPHA=222
T=224
VKRD=232; VVRD=233; VWR=234; VCST=235; VOFFA=236; VOFFB=237; VLANE=238; VTID=239; VL32=240; VH=241
VX=242
STAGE=33792; KBYTES=17408
SLOT=8704
WSLOT=4608
C_SCALE = (128 ** -0.5) * math.log2(math.e) * 2.0**49
TH = 8.0 / C_SCALE

def gen(name, nt="nt", stamps=0, D=3, NT=(35,31,31,31), DP=(6,0,0,0), SLP=4, PK=1, LAZY=1, SHIFT=1, PF=0, PFAT=5):
    assert sum(NT) == 128
    NROW = max(36, (max(NT)+3)//4*4)
    lut_t0 = sum(sum(NT[:r]) << (8*r) for r in range(4))
    lut_n = sum(NT[r] << (8*r) for r in range(4))
    lut_d = sum(DP[r] << (8*r) for r in range(4))
    QL=STAGE; KC=2*STAGE+1024; VC=KC+NROW*1024; LDS_TOTAL=KC+max(NROW*1536+1024, 8*SLOT)
    assert LDS_TOTAL <= 163840
    L=[]; A=L.append
    uid=[0]
    def stamp(i):
        if stamps: A(f"s_memrealtime s[{64+2*i}:{65+2*i}]")
    def stamp_out(kind=0):
        if not stamps: return
        if stamps == 2:
            uid[0]+=1; u=uid[0]
            A("s_waitcnt lgkmcnt(0)")
            A("s_cmp_lg_u32 s3, 0"); A(f"s_cbranch_scc1 L_so{u}")
            A("s_and_b32 s56, s36, 7"); A("s_cmp_lg_u32 s56, 3"); A(f"s_cbranch_scc1 L_so{u}")
            A("s_mov_b64 exec, 1")
            A("v_mov_b32 v8, 0")
            def amax(idx, sreg, neg=False):
                if neg:
                    A(f"s_not_b32 s56, {sreg}"); A("v_mov_b32 v9, s56")
                else: A(f"v_mov_b32 v9, {sreg}")
                A(f"global_atomic_umax v8, v9, s[20:21] offset:{4*idx}")
            def asum(idx, sreg):
                A(f"s_sub_u32 s56, {sreg}, s64"); A("v_mov_b32 v9, s56")
                A(f"global_atomic_add v8, v9, s[20:21] offset:{4*idx}")
            amax(0, "s64", True); amax(1, "s64"); asum(2, "s66"); asum(3, "s68")
            if kind == 0:
                amax(4, "s70"); asum(5, "s70"); amax(6, "s76"); asum(7, "s76"); amax(14, "s70", True)
            else:
                amax(8, "s70"); asum(9, "s70"); amax(10, "s76"); asum(11, "s76"); amax(12, "s78"); asum(13, "s78")
            A(f"L_so{u}:")
            return
        A("s_waitcnt lgkmcnt(0)")
        A("s_lshl_b32 s56, s2, 3"); A("s_add_u32 s56, s56, s3"); A("s_lshl_b32 s56, s56, 6"); A("s_add_u32 s56, s56, 0x4000000")
        A("s_add_u32 s28, s22, s56"); A("s_addc_u32 s29, s23, 0"); A("s_mov_b32 s30, 64"); A("s_mov_b32 s31, 0x20000")
        A("s_mov_b64 exec, 1")
        for i in range(8):
            A(f"v_mov_b32 v{i}, s{64+2*i}")
        A("v_mov_b32 v8, 0"); A("v_mov_b32 v9, s37")
        A("buffer_store_dwordx4 v[0:3], v8, s[28:31], 0 offen")
        A("buffer_store_dwordx4 v[4:7], v8, s[28:31], 0 offen offset:16")
        A("buffer_store_dword v9, v8, s[28:31], 0 offen offset:32")
    A(HDR.rstrip())
    A(f"; @launch grid=(256,1,1) block=(512,1,1) lds={LDS_TOTAL}")
    A('.amdgcn_target "amdgcn-amd-amdhsa--gfx950"')
    A(".text"); A(f".globl {KNAME}"); A(".p2align 8"); A(f".type {KNAME},@function"); A(f"{KNAME}:")
    A("s_cmp_ge_u32 s2, 256"); A("s_cbranch_scc1 L_end")
    for i in range(8): stamp(i)
    A("s_load_dwordx16 s[4:19], s[0:1], 0")
    A("s_load_dwordx4 s[20:23], s[0:1], 64")
    A(f"v_lshrrev_b32 v{T}, 6, v0")
    A(f"v_and_b32 v{VLANE}, 63, v0")
    A(f"v_mov_b32 v{VTID}, v0")
    A(f"v_readfirstlane_b32 s3, v{T}")
    A(f"v_and_b32 v{VL32}, 31, v0")
    A(f"v_bfe_u32 v{VH}, v0, 5, 1")
    def codepf(dst=VX):
        A(f"v_lshlrev_b32 v{VX+4}, 4, v{VTID}")
        for i in range(3):
            A(f"v_min_u32 v{VX+5}, s90, v{VX+4}")
            A(f"global_load_dwordx4 v[{dst}:{dst+3}], v{VX+5}, s[88:89]")
            if i < 2: A(f"v_add_u32 v{VX+4}, 8192, v{VX+4}")
    if PF:
        A("s_getpc_b64 s[88:89]")
        A("L_pc:")
        A(f"s_sub_u32 s88, s88, L_pc-{KNAME}")
        A("s_subb_u32 s89, s89, 0")
        A(f"s_mov_b32 s90, (L_end-{KNAME}-16)&0xfffffff0")
        if PF & 1: codepf(S)
    A("s_lshr_b32 s36, s2, 2")
    A("s_lshr_b32 s37, s2, 3")
    A("s_add_u32 s37, s37, s2")
    A("s_and_b32 s37, s37, 3")
    A("s_and_b32 s38, s3, 3")
    A("s_lshr_b32 s39, s3, 2")
    A("s_lshl_b32 s60, s37, 3")
    A(f"s_lshr_b32 s59, {lut_t0:#x}, s60"); A("s_and_b32 s59, s59, 0xff")
    A(f"s_lshr_b32 s42, {lut_n:#x}, s60"); A("s_and_b32 s42, s42, 0xff")
    A(f"s_lshr_b32 s61, {lut_d:#x}, s60"); A("s_and_b32 s61, s61, 0xff")
    A("s_lshl_b32 s58, s36, 22")
    A("s_lshl_b32 s60, s59, 15")
    A("s_add_u32 s58, s58, s60")
    A("s_lshl_b32 s60, s38, 13")
    A("s_movk_i32 s80, 272")
    A("s_mov_b64 vcc, -1")
    A("s_cmp_eq_u32 s39, 0")
    A("s_cbranch_scc0 L_v0")
    A(f"v_lshlrev_b32 v{VOFFA}, 4, v{VLANE}")
    A("s_branch L_v1")
    A("L_v0:")
    A(f"v_lshlrev_b32 v{VOFFA}, 4, v{VL32}")
    A(f"v_lshl_add_u32 v{VOFFA}, v{VH}, 11, v{VOFFA}")
    A("L_v1:")
    A(f"v_add_u32 v{VOFFA}, s60, v{VOFFA}")
    A(f"v_add_u32 v{VOFFB}, 4096, v{VOFFA}")
    A("s_waitcnt lgkmcnt(0)")
    A("s_cmp_eq_u32 s39, 0")
    A("s_cselect_b32 s24, s6, s8"); A("s_cselect_b32 s25, s7, s9")
    A("s_add_u32 s24, s24, s58"); A("s_addc_u32 s25, s25, 0")
    A("s_lshl_b32 s26, s42, 15"); A("s_mov_b32 s27, 0x20000")
    def srd(d, p, off, size):
        A(f"s_add_u32 s{d}, s{p}, s{off}"); A(f"s_addc_u32 s{d+1}, s{p+1}, 0")
        A(f"s_mov_b32 s{d+2}, {size}"); A(f"s_mov_b32 s{d+3}, 0x20000")
    def rawload(role, Rr, n, wait=True):
        step = 1024 if role=="K" else 512
        vo = VOFFA if n<4 else VOFFB
        if wait:
            uid[0]+=1; u = uid[0]
            A(f"s_cbranch_vccz L_w{u}")
            A(f"s_waitcnt vmcnt({D-1})")
        A(f"buffer_load_dwordx4 v[{Rr+4*n}:{Rr+4*n+3}], v{vo}, s[24:27], 0 offen offset:{(n%4)*step} {nt}")
        if n==3: A(f"v_add_u32 v{VOFFA}, 0x8000, v{VOFFA}")
        if n==7: A(f"v_add_u32 v{VOFFB}, 0x8000, v{VOFFB}")
        if wait: A(f"L_w{u}:")
    def burst(role, lst):
        uid[0]+=1; u = uid[0]
        A(f"s_cbranch_vccnz L_b{u}")
        for (Rl, n) in lst: rawload(role, Rl, n, False)
        A(f"L_b{u}:")

    def kconst(b):
        for i in range(4):
            A(f"v_lshlrev_b32 v{T}, 16, v{b+i}")
            A(f"v_and_b32 v{T+1}, 0xffff0000, v{b+i}")
            A(f"v_lshlrev_b32 v{T+2}, 16, v{b+4+i}")
            A(f"v_and_b32 v{T+3}, 0xffff0000, v{b+4+i}")
            A(f"v_mul_f32 v{S+2*i}, 0x71800000, v{T}")
            A(f"v_mul_f32 v{S+2*i+1}, 0x71800000, v{T+1}")
            A(f"v_mul_f32 v{T+2}, v{T+2}, v{T}")
            A(f"v_mul_f32 v{T+3}, v{T+3}, v{T+1}")
            A(f"v_mul_f32 v{S+8+2*i}, 0xa7000000, v{T+2}")
            A(f"v_mul_f32 v{S+8+2*i+1}, 0xa7000000, v{T+3}")
    def kwrite(o):
        A(f"ds_write_b128 v{VX}, v[{S}:{S+3}] offset:{o}")
        A(f"ds_write_b128 v{VX}, v[{S+4}:{S+7}] offset:{o+16}")
        A(f"ds_write_b128 v{VX}, v[{S+8}:{S+11}] offset:{o+512}")
        A(f"ds_write_b128 v{VX}, v[{S+12}:{S+15}] offset:{o+528}")
    def vconst(b, o):
        for i in range(2):
            A(f"v_lshlrev_b32 v{T+4}, 16, v{b+8+i}")
            A(f"v_and_b32 v{T+1}, 0xffff0000, v{b+8+i}")
            A(f"v_lshlrev_b32 v{T+2}, 16, v{b+10+i}")
            A(f"v_and_b32 v{T+3}, 0xffff0000, v{b+10+i}")
            A(f"v_mul_f32 v{P+2*i}, 0x71800000, v{T+4}")
            A(f"v_mul_f32 v{P+2*i+1}, 0x71800000, v{T+1}")
            A(f"v_mul_f32 v{T+2}, v{T+2}, v{T+4}")
            A(f"v_mul_f32 v{T+3}, v{T+3}, v{T+1}")
            A(f"v_mul_f32 v{P+4+2*i}, 0xa7000000, v{T+2}")
            A(f"v_mul_f32 v{P+4+2*i+1}, 0xa7000000, v{T+3}")
        A(f"ds_write_b128 v{VX+1}, v[{P}:{P+3}] offset:{o}")
        A(f"ds_write_b128 v{VX+1}, v[{P+4}:{P+7}] offset:{o+16}")

    def cst_reads(role):
        if role=="K":
            A(f"ds_read_b128 v[{S}:{S+3}], v{VCST}")
            A(f"ds_read_b128 v[{S+4}:{S+7}], v{VCST} offset:512")
            A(f"v_add_u32 v{VCST}, 1024, v{VCST}")
            return 2
        else:
            A(f"ds_read_b128 v[{S}:{S+3}], v{VCST}")
            A(f"ds_read_b128 v[{S+4}:{S+7}], v{VCST} offset:16")
            A(f"ds_read_b128 v[{S+8}:{S+11}], v{VCST} offset:64")
            A(f"ds_read_b128 v[{S+12}:{S+15}], v{VCST} offset:80")
            A(f"v_add_u32 v{VCST}, 512, v{VCST}")
            return 4

    def produce(role, Rr, b, pts, vw, pre=None):
        kb = b*STAGE; vb = kb + KBYTES
        if isinstance(vw, tuple):
            uid[0]+=1; u = uid[0]
            A(f"s_cbranch_vccz L_pw{u}")
            A(f"s_waitcnt vmcnt({vw[0]})")
            A(f"L_pw{u}:")
            A(f"s_waitcnt vmcnt({vw[1]}) lgkmcnt(0)")
        else:
            A(f"s_waitcnt vmcnt({vw}) lgkmcnt(0)")
        if pre: burst(role, pre)
        for p in range(4):
            for (Rl, n) in pts.get(p, []): rawload(role, Rl, n)
            if role=="K":
                for n in (2*p, 2*p+1):
                    r = Rr+4*n
                    if PK:
                        A(f"v_pk_fma_f32 v[{r}:{r+1}], v[{r}:{r+1}], v[{S}:{S+1}], v[{S+4}:{S+5}]")
                        A(f"v_pk_fma_f32 v[{r+2}:{r+3}], v[{r+2}:{r+3}], v[{S+2}:{S+3}], v[{S+6}:{S+7}]")
                    else:
                        for j in range(4):
                            A(f"v_fma_f32 v{r+j}, v{r+j}, v{S+j}, v{S+4+j}")
                    A(f"v_cvt_pk_bf16_f32 v{KF+2*n}, v{r}, v{r+1}")
                    A(f"v_cvt_pk_bf16_f32 v{KF+2*n+1}, v{r+2}, v{r+3}")
                    A(f"ds_write_b64 v{VWR}, v[{KF+2*n}:{KF+2*n+1}] offset:{kb+n*544}")
            else:
                for i in (2*p, 2*p+1):
                    r = Rr+4*i
                    cs = S + (i//4)*8 + i%4; cc = cs+4
                    if PK:
                        x = cs & 1; c0 = cs & ~1; c1 = cc & ~1
                        for jj in (0, 2):
                            A(f"v_pk_fma_f32 v[{r+jj}:{r+jj+1}], v[{r+jj}:{r+jj+1}], v[{c0}:{c0+1}], v[{c1}:{c1+1}] op_sel:[0,{x},{x}] op_sel_hi:[1,{x},{x}]")
                    else:
                        for j in range(4):
                            A(f"v_fma_f32 v{r+j}, v{r+j}, v{cs}, v{cc}")
                for j in range(4):
                    A(f"v_cvt_pk_bf16_f32 v{KF+4*j+p}, v{Rr+8*p+j}, v{Rr+8*p+4+j}")
        if role=="V":
            for j in range(4):
                A(f"ds_write_b128 v{VWR}, v[{KF+4*j}:{KF+4*j+3}] offset:{vb+j*1024}")
        for (Rl, n) in pts.get(4, []): rawload(role, Rl, n)

    def consume(role, b, pts):
        kb = b*STAGE; vb = kb + KBYTES
        def pt(k):
            for (Rl, n) in pts.get(k, []): rawload(role, Rl, n)
        for s in range(8):
            A(f"ds_read_b128 v[{KF+4*s}:{KF+4*s+3}], v{VKRD} offset:{kb+s*32}")
        pt(0)
        for s in range(8):
            A(f"s_waitcnt lgkmcnt({7-s})")
            c = "0" if s==0 else f"v[{S}:{S+15}]"
            A(f"v_mfma_f32_32x32x16_bf16 v[{S}:{S+15}], v[{KF+4*s}:{KF+4*s+3}], v[{Q+4*s}:{Q+4*s+3}], {c}")
        for x in range(8):
            A(f"ds_read_b128 v[{KF+4*x}:{KF+4*x+3}], v{VVRD} offset:{vb+x*1024}")
        pt(1)
        A("s_nop 3")
        A(f"v_max3_f32 v{T}, v{S}, v{S+1}, v{S+2}")
        A(f"v_max3_f32 v{T+1}, v{S+3}, v{S+4}, v{S+5}")
        A(f"v_max3_f32 v{T+2}, v{S+6}, v{S+7}, v{S+8}")
        A(f"v_max3_f32 v{T+3}, v{S+9}, v{S+10}, v{S+11}")
        A(f"v_max3_f32 v{T}, v{T}, v{S+12}, v{S+13}")
        A(f"v_max3_f32 v{T+1}, v{T+1}, v{S+14}, v{S+15}")
        A(f"v_max3_f32 v{T}, v{T}, v{T+2}, v{T+3}")
        uid[0]+=1; u=uid[0]
        if LAZY:
            A(f"v_max_f32 v{T}, v{T}, v{T+1}")
            A(f"v_cmp_gt_f32 s[82:83], v{T}, v{MTH}")
            A("s_nop 0")
            A("s_cmp_eq_u64 s[82:83], 0")
            A(f"s_cbranch_scc1 L_nr{u}")
            A(f"v_max_f32 v{T}, v{T}, v{M}")
        else:
            A(f"v_max3_f32 v{T}, v{T}, v{T+1}, v{M}")
        A(f"v_mov_b32 v{T+1}, v{T}")
        A("s_nop 1")
        A(f"v_permlane32_swap_b32 v{T}, v{T+1}")
        A("s_nop 0")
        A(f"v_max_f32 v{T}, v{T}, v{T+1}")
        A(f"v_sub_f32 v{T+2}, v{M}, v{T}")
        A(f"v_mul_f32 v{T+2}, s40, v{T+2}")
        A(f"v_mul_f32 v{NMC}, s44, v{T}")
        A(f"v_exp_f32 v{ALPHA}, v{T+2}")
        A(f"v_mov_b32 v{M}, v{T}")
        A(f"v_add_f32 v{MTH}, s45, v{T}")
        A(f"v_pk_mul_f32 v[{LS2}:{LS2+1}], v[{LS2}:{LS2+1}], v[{ALPHA}:{ALPHA+1}] op_sel_hi:[1,0]")
        for i in range(0, 64, 2):
            A(f"v_pk_mul_f32 v[{O+i}:{O+i+1}], v[{O+i}:{O+i+1}], v[{ALPHA}:{ALPHA+1}] op_sel_hi:[1,0]")
        if LAZY: A(f"L_nr{u}:")
        if PK:
            for r in range(0, 16, 2):
                A(f"v_pk_fma_f32 v[{S+r}:{S+r+1}], v[{S+r}:{S+r+1}], s[40:41], v[{NMC}:{NMC+1}] op_sel_hi:[1,1,0]")
        else:
            for r in range(16):
                A(f"v_fma_f32 v{S+r}, v{S+r}, s40, v{NMC}")
        for r in range(16):
            A(f"v_exp_f32 v{S+r}, v{S+r}")
        pt(2)
        for k in range(8):
            A(f"v_cvt_pk_bf16_f32 v{P+k}, v{S+2*k}, v{S+2*k+1}")
        for i in range(4):
            A(f"v_pk_add_f32 v[{T+2*i}:{T+2*i+1}], v[{S+4*i}:{S+4*i+1}], v[{S+4*i+2}:{S+4*i+3}]")
        A(f"v_pk_add_f32 v[{T}:{T+1}], v[{T}:{T+1}], v[{T+2}:{T+3}]")
        A(f"v_pk_add_f32 v[{T+4}:{T+5}], v[{T+4}:{T+5}], v[{T+6}:{T+7}]")
        nc = cst_reads(role)
        pt(3)
        A(f"s_waitcnt lgkmcnt({nc})")
        for s in range(2):
            for j in range(4):
                x = s*4+j
                A(f"v_mfma_f32_32x32x16_bf16 v[{O+16*j}:{O+16*j+15}], v[{KF+4*x}:{KF+4*x+3}], v[{P+4*s}:{P+4*s+3}], v[{O+16*j}:{O+16*j+15}]")
            if s==0:
                A(f"v_pk_add_f32 v[{T}:{T+1}], v[{T}:{T+1}], v[{T+4}:{T+5}]")
                A(f"v_pk_add_f32 v[{LS2}:{LS2+1}], v[{LS2}:{LS2+1}], v[{T}:{T+1}]")
        pt(4)

    def bar():
        A("s_waitcnt lgkmcnt(0)"); A("s_barrier")
    def setdeep():
        if PF & 2:
            uid[0]+=1
            A(f"s_cmp_lg_u32 s42, {PFAT}")
            A(f"s_cbranch_scc1 L_pf{uid[0]}")
            codepf()
            A(f"L_pf{uid[0]}:")
        A("s_cmp_gt_u32 s42, s61")
        A("s_cselect_b64 vcc, -1, 0")

    A("s_cmp_eq_u32 s39, 0")
    A("s_cbranch_scc0 L_V_entry")
    for role in ("K","V"):
        th = 0 if role=="K" else 1
        shifted = (role=="V" and SHIFT)
        A(f"L_{role}_entry:")
        for n in range(8): rawload(role, RA, n, False)
        A("s_lshl_b32 s43, s36, 15")
        A("s_lshl_b32 s57, s36, 14")
        srd(28, 10, 43, 32768)
        srd(32, 12, 43, 32768)
        srd(84, 14, 57, 16384)
        srd(48, 16, 57, 16384)
        srd(52, 4, 43, 32768)
        A("s_lshl_b32 s60, s59, 8")
        A(f"v_lshlrev_b32 v{T+4}, 4, v{VTID}")
        A(f"v_add_u32 v{T+4}, s60, v{T+4}")
        A("s_lshl_b32 s60, s59, 7")
        A(f"v_lshlrev_b32 v{T+5}, 3, v{VTID}")
        A(f"v_add_u32 v{T+5}, s60, v{T+5}")
        b = KF
        A(f"buffer_load_dwordx4 v[{b}:{b+3}], v{T+4}, s[28:31], 0 offen {nt}")
        A(f"buffer_load_dwordx4 v[{b+4}:{b+7}], v{T+4}, s[32:35], 0 offen {nt}")
        A(f"buffer_load_dwordx2 v[{b+8}:{b+9}], v{T+5}, s[84:87], 0 offen {nt}")
        A(f"buffer_load_dwordx2 v[{b+10}:{b+11}], v{T+5}, s[48:51], 0 offen {nt}")
        if role=="K":
            A(f"s_cmp_ge_u32 s3, {(NROW-32)//4}")
            A("s_cbranch_scc1 L_skip_l1")
            A(f"v_add_u32 v{T+4}, 8192, v{T+4}")
            A(f"v_add_u32 v{T+5}, 4096, v{T+5}")
            b = KF+12
            A(f"buffer_load_dwordx4 v[{b}:{b+3}], v{T+4}, s[28:31], 0 offen {nt}")
            A(f"buffer_load_dwordx4 v[{b+4}:{b+7}], v{T+4}, s[32:35], 0 offen {nt}")
            A(f"buffer_load_dwordx2 v[{b+8}:{b+9}], v{T+5}, s[84:87], 0 offen {nt}")
            A(f"buffer_load_dwordx2 v[{b+10}:{b+11}], v{T+5}, s[48:51], 0 offen {nt}")
            A("L_skip_l1:")
        A(f"v_lshlrev_b32 v{T+2}, 4, v{VLANE}")
        A("s_lshl_b32 s60, s3, 12")
        A(f"v_add_u32 v{T+2}, s60, v{T+2}")
        for n in range(4):
            A(f"buffer_load_dwordx4 v[{Q+4*n}:{Q+4*n+3}], v{T+2}, s[52:55], 0 offen offset:{n*1024} {nt}")
        NB0 = 4
        for n in range(NB0): rawload(role, RB, n, False)
        stamp(4)
        A(f"s_mov_b32 s40, {f32bits(C_SCALE):#x}")
        A(f"s_mov_b32 s41, {f32bits(C_SCALE):#x}")
        A(f"s_mov_b32 s44, {f32bits(-C_SCALE):#x}")
        A(f"s_mov_b32 s45, {f32bits(TH):#x}")
        if stamps == 2:
            A("s_lshr_b32 s56, s36, 4"); A("s_lshl_b32 s56, s56, 2"); A("s_add_u32 s56, s56, 240")
            A("s_and_b32 s91, s36, 15"); A("s_lshl_b32 s91, s91, 1"); A("s_lshl_b32 s92, 1, s91"); A("s_mov_b32 s93, 0")
        else:
            A("s_lshl_b32 s56, s36, 2")
        A("s_add_u32 s62, s20, s56"); A("s_addc_u32 s63, s21, 0")
        A("s_lshl_b32 s60, s39, 5")
        A(f"v_add_u32 v{T+3}, s60, v{VL32}")
        A(f"v_mul_lo_u32 v{VKRD}, v{T+3}, s80")
        A(f"v_lshl_add_u32 v{VKRD}, v{VH}, 4, v{VKRD}")
        A("s_lshl_b32 s60, s39, 13")
        A(f"v_lshlrev_b32 v{VVRD}, 4, v{VLANE}")
        A(f"v_add_u32 v{VVRD}, s60, v{VVRD}")
        if role=="K":
            A("s_lshl_b32 s60, s38, 4")
            A(f"v_add_u32 v{T+3}, s60, v{VH}")
            A(f"v_mul_lo_u32 v{VWR}, v{T+3}, s80")
            A(f"v_lshl_add_u32 v{VWR}, v{VL32}, 3, v{VWR}")
            A(f"v_lshlrev_b32 v{VCST}, 4, v{VL32}")
            A(f"v_add_u32 v{VCST}, {KC}, v{VCST}")
        else:
            A("s_lshl_b32 s60, s38, 12")
            A(f"v_lshlrev_b32 v{VWR}, 4, v{VLANE}")
            A(f"v_add_u32 v{VWR}, s60, v{VWR}")
            A("s_lshl_b32 s60, s38, 7")
            A(f"s_add_u32 s60, s60, {VC}")
            A(f"v_lshlrev_b32 v{VCST}, 5, v{VH}")
            A(f"v_add_u32 v{VCST}, s60, v{VCST}")
        for i in range(64): A(f"v_mov_b32 v{O+i}, 0")
        A(f"v_mov_b32 v{M}, {f32bits(-3.0e38):#x}")
        A(f"v_mov_b32 v{MTH}, {f32bits(-3.0e38):#x}")
        A(f"v_mov_b32 v{NMC}, 0")
        A(f"v_mov_b32 v{LS2}, 0"); A(f"v_mov_b32 v{LS2+1}, 0")
        A(f"v_lshrrev_b32 v{T}, 4, v{VTID}")
        A(f"v_and_b32 v{T+1}, 15, v{VTID}")
        A(f"v_lshlrev_b32 v{VX}, 10, v{T}")
        A(f"v_lshl_add_u32 v{VX}, v{T+1}, 5, v{VX}")
        A(f"v_add_u32 v{VX}, {KC}, v{VX}")
        A(f"v_lshlrev_b32 v{VX+1}, 5, v{VTID}")
        A(f"v_add_u32 v{VX+1}, {VC}, v{VX+1}")
        A(f"v_lshrrev_b32 v{T}, 4, v{VLANE}")
        A("s_lshl_b32 s60, s3, 4")
        A(f"v_add_u32 v{T}, s60, v{T}")
        A(f"v_mul_lo_u32 v{VX+2}, v{T}, s80")
        A(f"v_lshl_add_u32 v{VX+2}, v{T+1}, 4, v{VX+2}")
        A(f"v_add_u32 v{VX+2}, {QL}, v{VX+2}")
        A("s_lshl_b32 s60, s38, 5")
        A(f"v_add_u32 v{T}, s60, v{VL32}")
        A(f"v_mul_lo_u32 v{VX+3}, v{T}, s80")
        A(f"v_lshl_add_u32 v{VX+3}, v{VH}, 4, v{VX+3}")
        A(f"v_add_u32 v{VX+3}, {QL}, v{VX+3}")
        A(f"s_waitcnt vmcnt({NB0})")
        stamp(5)
        kconst(KF); kwrite(0); rawload(role, RB, 4); vconst(KF, 0)
        for n in range(4):
            A(f"ds_write_b128 v{VX+2}, v[{Q+4*n}:{Q+4*n+3}] offset:{n*4*272}")
        if role=="K":
            A(f"s_cmp_ge_u32 s3, {(NROW-32)//4}")
            A("s_cbranch_scc1 L_skip_p1")
            kconst(KF+12); kwrite(32768); vconst(KF+12, 16384)
            A("L_skip_p1:")
        rawload(role, RB, 5)
        bar()
        stamp(1)
        for s in range(8):
            A(f"ds_read_b128 v[{Q+4*s}:{Q+4*s+3}], v{VX+3} offset:{s*32}")
        cst_reads(role)
        produce(role, RA, 0, {1:[(RB,6)], 3:[(RB,7)]}, 6)
        if shifted:
            cst_reads(role)
            for n in range(4): rawload(role, RA, n)
        bar()
        stamp(2)
        A(f"L_{role}_loop:")
        for par in range(2):
            Rc = (RA, RB)[par]
            Rn = (RB, RA)[par]
            setdeep()
            if not shifted:
                burst(role, [(Rc, n) for n in range(8)])
                consume(role, par, {0:[(Rc,0)], 1:[(Rc,1)], 2:[(Rc,2)], 3:[(Rc,3)], 4:[(Rc,4)]})
                A("s_sub_u32 s42, s42, 1")
                A("s_cmp_eq_u32 s42, 0")
                A(f"s_cbranch_scc1 L_{role}_epi")
                produce(role, Rn, 1-par, {1:[(Rc,5)], 3:[(Rc,6)], 4:[(Rc,7)]}, (5,8))
                bar()
            else:
                A("s_cmp_eq_u32 s42, 1")
                A(f"s_cbranch_scc1 L_{role}_last{par}")
                produce(role, Rn, 1-par, {0:[(Rc,4)], 2:[(Rc,5)], 4:[(Rc,6)]}, 4, pre=[(Rc, n) for n in range(4,8)])
                burst(role, [(Rn, n) for n in range(4)])
                consume(role, par, {0:[(Rc,7)], 1:[(Rn,0)], 2:[(Rn,1)], 3:[(Rn,2)], 4:[(Rn,3)]})
                A("s_sub_u32 s42, s42, 1")
                bar()
        A(f"s_branch L_{role}_loop")
        if shifted:
            for par in range(2):
                A(f"L_{role}_last{par}:")
                A("s_waitcnt lgkmcnt(0)")
                consume(role, par, {})
                if par==0: A(f"s_branch L_{role}_epi")
        A(f"L_{role}_epi:")
        A("s_waitcnt vmcnt(0) lgkmcnt(0)")
        stamp(3)
        A(f"v_add_f32 v{LT}, v{LS2}, v{LS2+1}")
        A(f"v_mov_b32 v{T}, v{LT}")
        A("s_nop 1")
        A(f"v_permlane32_swap_b32 v{LT}, v{T}")
        A("s_nop 0")
        A(f"v_add_f32 v{LT}, v{LT}, v{T}")
        A(f"s_mul_i32 s56, s3, {SLOT}"); A(f"s_add_u32 s56, s56, {KC}")
        A("s_xor_b32 s58, s3, 4")
        A(f"s_mul_i32 s57, s58, {SLOT}"); A(f"s_add_u32 s57, s57, {KC}")
        A(f"v_lshlrev_b32 v{T+1}, 4, v{VLANE}")
        A(f"v_add_u32 v{T+2}, s56, v{T+1}")
        A(f"v_add_u32 v{T+3}, s57, v{T+1}")
        A(f"v_lshlrev_b32 v{T+1}, 3, v{VLANE}")
        A(f"v_add_u32 v{T+4}, s56, v{T+1}")
        A(f"v_add_u32 v{T+5}, s57, v{T+1}")
        A("s_nop 7")
        k=0
        for j in range(4):
            for hh in range(2):
                r = O+16*j+8*(1-th)+4*hh
                A(f"ds_write_b128 v{T+2}, v[{r}:{r+3}] offset:{k*1024}")
                k+=1
        A(f"ds_write_b64 v{T+4}, v[{M}:{M+1}] offset:8192")
        if role=="K":
            A("s_or_b32 s56, s3, s37")
            A("s_cmp_lg_u32 s56, 0")
            A("s_cbranch_scc1 L_nopoll")
            A(f"v_mov_b32 v{VX}, 0")
            A("L_poll:")
            A(f"global_load_dword v{VX+1}, v{VX}, s[62:63] sc1")
            A("s_waitcnt vmcnt(0)")
            A(f"v_readfirstlane_b32 s58, v{VX+1}")
            if stamps == 2:
                A("s_add_u32 s93, s93, 1"); A("s_cmp_gt_u32 s93, 2000"); A("s_cbranch_scc1 L_nopoll")
                A("s_lshr_b32 s58, s58, s91"); A("s_and_b32 s58, s58, 3")
            A("s_cmp_ge_u32 s58, 3")
            A("s_cbranch_scc1 L_nopoll")
            if SLP: A(f"s_sleep {SLP}")
            A("s_branch L_poll")
            A("L_nopoll:")
        A("s_waitcnt lgkmcnt(0)"); A("s_barrier")
        dst = [RA, RB, Q]
        A("s_cmp_lg_u32 s37, 0")
        A(f"s_cbranch_scc1 L_{role}_nold")
        stamp(6)
        A("s_mul_i32 s56, s36, 24"); A("s_add_u32 s56, s56, s3")
        A(f"s_mul_i32 s56, s56, {WSLOT}")
        srd(28, 22, 56, WSLOT*17)
        A(f"v_lshlrev_b32 v{T}, 4, v{VLANE}")
        A(f"v_lshlrev_b32 v{T+1}, 3, v{VLANE}")
        for t in range(3):
            A(f"v_add_u32 v{VX+2}, {t*8*WSLOT+4096}, v{T+1}")
            A(f"buffer_load_dwordx2 v[{P+2*t}:{P+2*t+1}], v{VX+2}, s[28:31], 0 offen sc1")
        for t in range(3):
            A(f"v_add_u32 v{VX}, {t*8*WSLOT}, v{T}")
            for k in range(4):
                r = RA+16*t+4*k
                A(f"buffer_load_dwordx4 v[{r}:{r+3}], v{VX}, s[28:31], 0 offen offset:{k*1024} sc1")
        A(f"L_{role}_nold:")
        for k in range(8):
            A(f"ds_read_b128 v[{KF+4*k}:{KF+4*k+3}], v{T+3} offset:{k*1024}")
        A(f"ds_read_b64 v[{VX+4}:{VX+5}], v{T+5} offset:8192")
        A("s_waitcnt lgkmcnt(0)")
        A(f"v_max_f32 v{T}, v{M}, v{VX+4}")
        A(f"v_sub_f32 v{T+2}, v{M}, v{T}")
        A(f"v_sub_f32 v{T+4}, v{VX+4}, v{T}")
        A(f"v_mul_f32 v{T+2}, s40, v{T+2}")
        A(f"v_mul_f32 v{T+4}, s40, v{T+4}")
        A(f"v_exp_f32 v{T+2}, v{T+2}")
        A(f"v_exp_f32 v{T+4}, v{T+4}")
        A(f"v_mov_b32 v{M}, v{T}")
        A(f"v_mul_f32 v{LT}, v{LT}, v{T+2}")
        A(f"v_fmac_f32 v{LT}, v{VX+5}, v{T+4}")
        keep = [O+16*j+8*th+4*hh+c for j in range(4) for hh in range(2) for c in range(4)]
        for idx in range(0, 32, 2):
            r = keep[idx]
            A(f"v_pk_mul_f32 v[{r}:{r+1}], v[{r}:{r+1}], v[{T+2}:{T+3}] op_sel_hi:[1,0]")
            A(f"v_pk_fma_f32 v[{r}:{r+1}], v[{KF+idx}:{KF+idx+1}], v[{T+4}:{T+5}], v[{r}:{r+1}] op_sel_hi:[1,0,1]")
        A("s_cmp_eq_u32 s37, 0")
        A(f"s_cbranch_scc1 L_{role}_comb")
        A("s_mul_i32 s56, s36, 3"); A("s_add_u32 s56, s56, s37"); A("s_sub_u32 s56, s56, 1"); A("s_lshl_b32 s56, s56, 3"); A("s_add_u32 s56, s56, s3")
        A(f"s_mul_i32 s56, s56, {WSLOT}")
        srd(28, 22, 56, WSLOT)
        A(f"v_lshlrev_b32 v{T}, 4, v{VLANE}")
        A(f"v_lshlrev_b32 v{T+2}, 3, v{VLANE}")
        A(f"v_add_u32 v{T+2}, 4096, v{T+2}")
        A(f"buffer_store_dwordx2 v[{M}:{M+1}], v{T+2}, s[28:31], 0 offen sc1")
        for k in range(4):
            for c in range(4):
                r = keep[8*k+2*c]
                A(f"v_cvt_pk_bf16_f32 v{KF+4*k+c}, v{r}, v{r+1}")
            A(f"buffer_store_dwordx4 v[{KF+4*k}:{KF+4*k+3}], v{T}, s[28:31], 0 offen offset:{k*1024} sc1")
        A("s_waitcnt vmcnt(0)")
        A("s_barrier")
        stamp(6)
        if stamps != 2: stamp_out()
        if role=="K":
            A("s_cmp_lg_u32 s3, 0")
            A("s_cbranch_scc1 L_end")
            A("s_mov_b64 exec, 1")
            A(f"v_mov_b32 v{VX}, 0")
            A(f"v_mov_b32 v{VX+1}, s92" if stamps == 2 else f"v_mov_b32 v{VX+1}, 1")
            A(f"global_atomic_add v{VX}, v{VX+1}, s[62:63]")
            if stamps == 2:
                A("s_sleep 100"); A("s_sleep 100"); A("s_sleep 100")
                stamp_out()
        A("s_endpgm")
        A(f"L_{role}_comb:")
        srd(32, 18, 43, 32768)
        A("s_lshl_b32 s56, s38, 13")
        A(f"v_lshlrev_b32 v{VTID}, 8, v{VL32}")
        A(f"v_lshl_add_u32 v{VTID}, v{VH}, 5, v{VTID}")
        A(f"v_add_u32 v{VTID}, s56, v{VTID}")
        A("s_waitcnt vmcnt(12)")
        A(f"v_max3_f32 v{T}, v{M}, v{P}, v{P+2}")
        A(f"v_max_f32 v{T}, v{T}, v{P+4}")
        ms = [M, P, P+2, P+4]
        F = [VX, VX+2, VX+4, VX+6]
        for i, m in enumerate(ms):
            A(f"v_sub_f32 v{F[i]}, v{m}, v{T}")
        for i in range(4):
            A(f"v_mul_f32 v{F[i]}, s40, v{F[i]}")
        for i in range(4):
            A(f"v_exp_f32 v{F[i]}, v{F[i]}")
        A("s_nop 0")
        A(f"v_mul_f32 v{LT}, v{LT}, v{F[0]}")
        for i in range(3):
            A(f"v_fmac_f32 v{LT}, v{P+2*i+1}, v{F[1+i]}")
        A(f"v_rcp_f32 v{T}, v{LT}")
        A("s_nop 0")
        A(f"v_mul_f32 v{T}, 0x58000000, v{T}")
        for i in range(4):
            A(f"v_mul_f32 v{F[i]}, v{F[i]}, v{T}")
        for idx in range(0, 32, 2):
            r = keep[idx]
            A(f"v_pk_mul_f32 v[{r}:{r+1}], v[{r}:{r+1}], v[{F[0]}:{F[0]+1}] op_sel_hi:[1,0]")
        for t in range(3):
            A(f"s_waitcnt vmcnt({8-4*t})")
            for i in range(16):
                src = RA+16*t+i; tmp = KF+2*i
                A(f"v_lshlrev_b32 v{tmp}, 16, v{src}")
                A(f"v_and_b32 v{tmp+1}, 0xffff0000, v{src}")
            for i in range(16):
                r = keep[2*i]; tmp = KF+2*i
                A(f"v_pk_fma_f32 v[{r}:{r+1}], v[{tmp}:{tmp+1}], v[{F[1+t]}:{F[1+t]+1}], v[{r}:{r+1}] op_sel_hi:[1,0,1]")
        for a in range(2):
            for c in range(4):
                r = 8*th+4*a+c
                A(f"v_cvt_pk_bf16_f32 v{S+8*a+2*c}, v{O+r}, v{O+16+r}")
                A(f"v_cvt_pk_bf16_f32 v{S+8*a+2*c+1}, v{O+32+r}, v{O+48+r}")
            A(f"buffer_store_dwordx4 v[{S+8*a}:{S+8*a+3}], v{VTID}, s[32:35], 0 offen offset:{128*th+64*a}")
            A(f"buffer_store_dwordx4 v[{S+8*a+4}:{S+8*a+7}], v{VTID}, s[32:35], 0 offen offset:{128*th+64*a+16}")
        if stamps:
            A("s_waitcnt vmcnt(0)")
            stamp(7)
            stamp_out(1)
        A("s_endpgm")
    A("L_end:"); A("s_endpgm")
    A('.section .rodata,"a"'); A(".p2align 6"); A(f".amdhsa_kernel {KNAME}")
    A("  .amdhsa_next_free_vgpr 256"); A("  .amdhsa_next_free_sgpr 96"); A("  .amdhsa_accum_offset 256")
    A("  .amdhsa_float_denorm_mode_32 3")
    A("  .amdhsa_group_segment_fixed_size 0"); A("  .amdhsa_kernarg_size 80"); A("  .amdhsa_user_sgpr_count 2")
    A("  .amdhsa_user_sgpr_kernarg_segment_ptr 1"); A("  .amdhsa_system_sgpr_workgroup_id_x 1"); A(".end_amdhsa_kernel")
    open(name, "w").write("\n".join(L) + "\n")

if __name__ == "__main__":
    kw = {}
    for a in sys.argv[2:]:
        if a == "--stamps": kw["stamps"] = 1
        elif a == "--stamps2": kw["stamps"] = 2
        elif a.startswith("--"):
            k, v = a[2:].split("=")
            kw[k] = tuple(int(x) for x in v.split(",")) if "," in v else int(v)
    gen(sys.argv[1], **kw)
```

```python
import sys, struct, math
KNAME = "standalone__kv_cache_quant_int4_int2_kv_with_per_channel_or_per_token_scales__sampling_kernel"
HDR = open("standalone__kv_cache_quant_int4_int2_kv_with_per_channel_or_per_token_scales__sampling.s.ref").read().split("; Override")[0]

def f32bits(x): return struct.unpack("<I", struct.pack("<f", x))[0]

O=0; Q=64; S=96; KF=112; P=144; RA=152; RB=184
M=216; LT=217; LS2=218; NMC=220; MTH=221; ALPHA=222
T=224
VKRD=232; VVRD=233; VWR=234; VCST=235; VOFFA=236; VOFFB=237; VLANE=238; VTID=239; VL32=240; VH=241
VX=242
STAGE=33792; KBYTES=17408
SLOT=8704
WSLOT=4608
C_SCALE = (128 ** -0.5) * math.log2(math.e) * 2.0**49
TH = 8.0 / C_SCALE

def gen(name, nt="nt", stamps=0, D=3, NT=(35,31,31,31), DP=(6,0,0,0), SLP=4, PK=1, LAZY=1, SHIFT=1, PF=0, PFAT=5):
    assert sum(NT) == 128
    NROW = max(36, (max(NT)+3)//4*4)
    lut_t0 = sum(sum(NT[:r]) << (8*r) for r in range(4))
    lut_n = sum(NT[r] << (8*r) for r in range(4))
    lut_d = sum(DP[r] << (8*r) for r in range(4))
    QL=STAGE; KC=2*STAGE+1024; VC=KC+NROW*1024; MBX=KC+max(NROW*1536+1024, 8*SLOT); LDS_TOTAL=MBX+64
    assert LDS_TOTAL <= 163840
    L=[]; A=L.append
    uid=[0]
    def stamp(i):
        if stamps: A(f"s_memrealtime s[{64+2*i}:{65+2*i}]")
    def stamp_out(kind=0):
        if not stamps: return
        if stamps == 2:
            uid[0]+=1; u=uid[0]
            A("s_waitcnt lgkmcnt(0)")
            A("s_cmp_lg_u32 s3, 0"); A(f"s_cbranch_scc1 L_so{u}")
            A("s_and_b32 s56, s36, 7"); A("s_cmp_lg_u32 s56, 3"); A(f"s_cbranch_scc1 L_so{u}")
            A("s_mov_b64 exec, 1")
            A("v_mov_b32 v8, 0")
            def amax(idx, sreg, neg=False):
                if neg:
                    A(f"s_not_b32 s56, {sreg}"); A("v_mov_b32 v9, s56")
                else: A(f"v_mov_b32 v9, {sreg}")
                A(f"global_atomic_umax v8, v9, s[20:21] offset:{4*idx}")
            def asum(idx, sreg):
                A(f"s_sub_u32 s56, {sreg}, s64"); A("v_mov_b32 v9, s56")
                A(f"global_atomic_add v8, v9, s[20:21] offset:{4*idx}")
            amax(0, "s64", True); amax(1, "s64"); asum(2, "s66"); asum(3, "s68")
            if kind == 0:
                amax(4, "s70"); asum(5, "s70"); amax(6, "s76"); asum(7, "s76"); amax(14, "s70", True)
            else:
                amax(8, "s70"); asum(9, "s70"); amax(10, "s76"); asum(11, "s76"); amax(12, "s78"); asum(13, "s78")
            A(f"L_so{u}:")
            return
        A("s_waitcnt lgkmcnt(0)")
        A("s_lshl_b32 s56, s2, 3"); A("s_add_u32 s56, s56, s3"); A("s_lshl_b32 s56, s56, 6"); A("s_add_u32 s56, s56, 0x4000000")
        A("s_add_u32 s28, s22, s56"); A("s_addc_u32 s29, s23, 0"); A("s_mov_b32 s30, 64"); A("s_mov_b32 s31, 0x20000")
        A("s_mov_b64 exec, 1")
        for i in range(8):
            A(f"v_mov_b32 v{i}, s{64+2*i}")
        A("v_mov_b32 v8, 0"); A("v_mov_b32 v9, s37")
        A("buffer_store_dwordx4 v[0:3], v8, s[28:31], 0 offen")
        A("buffer_store_dwordx4 v[4:7], v8, s[28:31], 0 offen offset:16")
        A("buffer_store_dword v9, v8, s[28:31], 0 offen offset:32")
    A(HDR.rstrip())
    A(f"; @launch grid=(256,1,1) block=(512,1,1) lds={LDS_TOTAL}")
    A('.amdgcn_target "amdgcn-amd-amdhsa--gfx950"')
    A(".text"); A(f".globl {KNAME}"); A(".p2align 8"); A(f".type {KNAME},@function"); A(f"{KNAME}:")
    A("s_cmp_ge_u32 s2, 256"); A("s_cbranch_scc1 L_end")
    for i in range(8): stamp(i)
    A("s_load_dwordx16 s[4:19], s[0:1], 0")
    A("s_load_dwordx4 s[20:23], s[0:1], 64")
    A(f"v_lshrrev_b32 v{T}, 6, v0")
    A(f"v_and_b32 v{VLANE}, 63, v0")
    A(f"v_mov_b32 v{VTID}, v0")
    A(f"v_readfirstlane_b32 s3, v{T}")
    A(f"v_and_b32 v{VL32}, 31, v0")
    A(f"v_bfe_u32 v{VH}, v0, 5, 1")
    def codepf(dst=VX):
        A(f"v_lshlrev_b32 v{VX+4}, 4, v{VTID}")
        for i in range(3):
            A(f"v_min_u32 v{VX+5}, s90, v{VX+4}")
            A(f"global_load_dwordx4 v[{dst}:{dst+3}], v{VX+5}, s[88:89]")
            if i < 2: A(f"v_add_u32 v{VX+4}, 8192, v{VX+4}")
    if PF:
        A("s_getpc_b64 s[88:89]")
        A("L_pc:")
        A(f"s_sub_u32 s88, s88, L_pc-{KNAME}")
        A("s_subb_u32 s89, s89, 0")
        A(f"s_mov_b32 s90, (L_end-{KNAME}-16)&0xfffffff0")
        if PF & 1: codepf(S)
    A("s_lshr_b32 s36, s2, 2")
    A("s_lshr_b32 s37, s2, 3")
    A("s_add_u32 s37, s37, s2")
    A("s_and_b32 s37, s37, 3")
    A("s_and_b32 s38, s3, 3")
    A("s_lshr_b32 s39, s3, 2")
    A("s_lshl_b32 s60, s37, 3")
    A(f"s_lshr_b32 s59, {lut_t0:#x}, s60"); A("s_and_b32 s59, s59, 0xff")
    A(f"s_lshr_b32 s42, {lut_n:#x}, s60"); A("s_and_b32 s42, s42, 0xff")
    A(f"s_lshr_b32 s61, {lut_d:#x}, s60"); A("s_and_b32 s61, s61, 0xff")
    A("s_lshl_b32 s58, s36, 22")
    A("s_lshl_b32 s60, s59, 15")
    A("s_add_u32 s58, s58, s60")
    A("s_lshl_b32 s60, s38, 13")
    A("s_movk_i32 s80, 272")
    A("s_mov_b64 vcc, -1")
    A("s_cmp_eq_u32 s39, 0")
    A("s_cbranch_scc0 L_v0")
    A(f"v_lshlrev_b32 v{VOFFA}, 4, v{VLANE}")
    A("s_branch L_v1")
    A("L_v0:")
    A(f"v_lshlrev_b32 v{VOFFA}, 4, v{VL32}")
    A(f"v_lshl_add_u32 v{VOFFA}, v{VH}, 11, v{VOFFA}")
    A("L_v1:")
    A(f"v_add_u32 v{VOFFA}, s60, v{VOFFA}")
    A(f"v_add_u32 v{VOFFB}, 4096, v{VOFFA}")
    A("s_waitcnt lgkmcnt(0)")
    A("s_cmp_eq_u32 s39, 0")
    A("s_cselect_b32 s24, s6, s8"); A("s_cselect_b32 s25, s7, s9")
    A("s_add_u32 s24, s24, s58"); A("s_addc_u32 s25, s25, 0")
    A("s_lshl_b32 s26, s42, 15"); A("s_mov_b32 s27, 0x20000")
    def srd(d, p, off, size):
        A(f"s_add_u32 s{d}, s{p}, s{off}"); A(f"s_addc_u32 s{d+1}, s{p+1}, 0")
        A(f"s_mov_b32 s{d+2}, {size}"); A(f"s_mov_b32 s{d+3}, 0x20000")
    def rawload(role, Rr, n, wait=True):
        step = 1024 if role=="K" else 512
        vo = VOFFA if n<4 else VOFFB
        if wait:
            uid[0]+=1; u = uid[0]
            A(f"s_cbranch_vccz L_w{u}")
            A(f"s_waitcnt vmcnt({D-1})")
        A(f"buffer_load_dwordx4 v[{Rr+4*n}:{Rr+4*n+3}], v{vo}, s[24:27], 0 offen offset:{(n%4)*step} {nt}")
        if n==3: A(f"v_add_u32 v{VOFFA}, 0x8000, v{VOFFA}")
        if n==7: A(f"v_add_u32 v{VOFFB}, 0x8000, v{VOFFB}")
        if wait: A(f"L_w{u}:")
    def burst(role, lst):
        uid[0]+=1; u = uid[0]
        A(f"s_cbranch_vccnz L_b{u}")
        for (Rl, n) in lst: rawload(role, Rl, n, False)
        A(f"L_b{u}:")

    def kconst(b):
        for i in range(4):
            A(f"v_lshlrev_b32 v{T}, 16, v{b+i}")
            A(f"v_and_b32 v{T+1}, 0xffff0000, v{b+i}")
            A(f"v_lshlrev_b32 v{T+2}, 16, v{b+4+i}")
            A(f"v_and_b32 v{T+3}, 0xffff0000, v{b+4+i}")
            A(f"v_mul_f32 v{S+2*i}, 0x71800000, v{T}")
            A(f"v_mul_f32 v{S+2*i+1}, 0x71800000, v{T+1}")
            A(f"v_mul_f32 v{T+2}, v{T+2}, v{T}")
            A(f"v_mul_f32 v{T+3}, v{T+3}, v{T+1}")
            A(f"v_mul_f32 v{S+8+2*i}, 0xa7000000, v{T+2}")
            A(f"v_mul_f32 v{S+8+2*i+1}, 0xa7000000, v{T+3}")
    def kwrite(o):
        A(f"ds_write_b128 v{VX}, v[{S}:{S+3}] offset:{o}")
        A(f"ds_write_b128 v{VX}, v[{S+4}:{S+7}] offset:{o+16}")
        A(f"ds_write_b128 v{VX}, v[{S+8}:{S+11}] offset:{o+512}")
        A(f"ds_write_b128 v{VX}, v[{S+12}:{S+15}] offset:{o+528}")
    def vconst(b, o):
        for i in range(2):
            A(f"v_lshlrev_b32 v{T+4}, 16, v{b+8+i}")
            A(f"v_and_b32 v{T+1}, 0xffff0000, v{b+8+i}")
            A(f"v_lshlrev_b32 v{T+2}, 16, v{b+10+i}")
            A(f"v_and_b32 v{T+3}, 0xffff0000, v{b+10+i}")
            A(f"v_mul_f32 v{P+2*i}, 0x71800000, v{T+4}")
            A(f"v_mul_f32 v{P+2*i+1}, 0x71800000, v{T+1}")
            A(f"v_mul_f32 v{T+2}, v{T+2}, v{T+4}")
            A(f"v_mul_f32 v{T+3}, v{T+3}, v{T+1}")
            A(f"v_mul_f32 v{P+4+2*i}, 0xa7000000, v{T+2}")
            A(f"v_mul_f32 v{P+4+2*i+1}, 0xa7000000, v{T+3}")
        A(f"ds_write_b128 v{VX+1}, v[{P}:{P+3}] offset:{o}")
        A(f"ds_write_b128 v{VX+1}, v[{P+4}:{P+7}] offset:{o+16}")

    def cst_reads(role):
        if role=="K":
            A(f"ds_read_b128 v[{S}:{S+3}], v{VCST}")
            A(f"ds_read_b128 v[{S+4}:{S+7}], v{VCST} offset:512")
            A(f"v_add_u32 v{VCST}, 1024, v{VCST}")
            return 2
        else:
            A(f"ds_read_b128 v[{S}:{S+3}], v{VCST}")
            A(f"ds_read_b128 v[{S+4}:{S+7}], v{VCST} offset:16")
            A(f"ds_read_b128 v[{S+8}:{S+11}], v{VCST} offset:64")
            A(f"ds_read_b128 v[{S+12}:{S+15}], v{VCST} offset:80")
            A(f"v_add_u32 v{VCST}, 512, v{VCST}")
            return 4

    def produce(role, Rr, b, pts, vw, pre=None):
        kb = b*STAGE; vb = kb + KBYTES
        if isinstance(vw, tuple):
            uid[0]+=1; u = uid[0]
            A(f"s_cbranch_vccz L_pw{u}")
            A(f"s_waitcnt vmcnt({vw[0]})")
            A(f"L_pw{u}:")
            A(f"s_waitcnt vmcnt({vw[1]}) lgkmcnt(0)")
        else:
            A(f"s_waitcnt vmcnt({vw}) lgkmcnt(0)")
        if pre: burst(role, pre)
        for p in range(4):
            for (Rl, n) in pts.get(p, []): rawload(role, Rl, n)
            if role=="K":
                for n in (2*p, 2*p+1):
                    r = Rr+4*n
                    if PK:
                        A(f"v_pk_fma_f32 v[{r}:{r+1}], v[{r}:{r+1}], v[{S}:{S+1}], v[{S+4}:{S+5}]")
                        A(f"v_pk_fma_f32 v[{r+2}:{r+3}], v[{r+2}:{r+3}], v[{S+2}:{S+3}], v[{S+6}:{S+7}]")
                    else:
                        for j in range(4):
                            A(f"v_fma_f32 v{r+j}, v{r+j}, v{S+j}, v{S+4+j}")
                    A(f"v_cvt_pk_bf16_f32 v{KF+2*n}, v{r}, v{r+1}")
                    A(f"v_cvt_pk_bf16_f32 v{KF+2*n+1}, v{r+2}, v{r+3}")
                    A(f"ds_write_b64 v{VWR}, v[{KF+2*n}:{KF+2*n+1}] offset:{kb+n*544}")
            else:
                for i in (2*p, 2*p+1):
                    r = Rr+4*i
                    cs = S + (i//4)*8 + i%4; cc = cs+4
                    if PK:
                        x = cs & 1; c0 = cs & ~1; c1 = cc & ~1
                        for jj in (0, 2):
                            A(f"v_pk_fma_f32 v[{r+jj}:{r+jj+1}], v[{r+jj}:{r+jj+1}], v[{c0}:{c0+1}], v[{c1}:{c1+1}] op_sel:[0,{x},{x}] op_sel_hi:[1,{x},{x}]")
                    else:
                        for j in range(4):
                            A(f"v_fma_f32 v{r+j}, v{r+j}, v{cs}, v{cc}")
                for j in range(4):
                    A(f"v_cvt_pk_bf16_f32 v{KF+4*j+p}, v{Rr+8*p+j}, v{Rr+8*p+4+j}")
        if role=="V":
            for j in range(4):
                A(f"ds_write_b128 v{VWR}, v[{KF+4*j}:{KF+4*j+3}] offset:{vb+j*1024}")
        for (Rl, n) in pts.get(4, []): rawload(role, Rl, n)

    def consume(role, b, pts):
        kb = b*STAGE; vb = kb + KBYTES
        def pt(k):
            for (Rl, n) in pts.get(k, []): rawload(role, Rl, n)
        for s in range(8):
            A(f"ds_read_b128 v[{KF+4*s}:{KF+4*s+3}], v{VKRD} offset:{kb+s*32}")
        pt(0)
        for s in range(8):
            A(f"s_waitcnt lgkmcnt({7-s})")
            c = "0" if s==0 else f"v[{S}:{S+15}]"
            A(f"v_mfma_f32_32x32x16_bf16 v[{S}:{S+15}], v[{KF+4*s}:{KF+4*s+3}], v[{Q+4*s}:{Q+4*s+3}], {c}")
        for x in range(8):
            A(f"ds_read_b128 v[{KF+4*x}:{KF+4*x+3}], v{VVRD} offset:{vb+x*1024}")
        pt(1)
        A("s_nop 3")
        A(f"v_max3_f32 v{T}, v{S}, v{S+1}, v{S+2}")
        A(f"v_max3_f32 v{T+1}, v{S+3}, v{S+4}, v{S+5}")
        A(f"v_max3_f32 v{T+2}, v{S+6}, v{S+7}, v{S+8}")
        A(f"v_max3_f32 v{T+3}, v{S+9}, v{S+10}, v{S+11}")
        A(f"v_max3_f32 v{T}, v{T}, v{S+12}, v{S+13}")
        A(f"v_max3_f32 v{T+1}, v{T+1}, v{S+14}, v{S+15}")
        A(f"v_max3_f32 v{T}, v{T}, v{T+2}, v{T+3}")
        uid[0]+=1; u=uid[0]
        if LAZY:
            A(f"v_max_f32 v{T}, v{T}, v{T+1}")
            A(f"v_cmp_gt_f32 s[82:83], v{T}, v{MTH}")
            A("s_nop 0")
            A("s_cmp_eq_u64 s[82:83], 0")
            A(f"s_cbranch_scc1 L_nr{u}")
            A(f"v_max_f32 v{T}, v{T}, v{M}")
        else:
            A(f"v_max3_f32 v{T}, v{T}, v{T+1}, v{M}")
        A(f"v_mov_b32 v{T+1}, v{T}")
        A("s_nop 1")
        A(f"v_permlane32_swap_b32 v{T}, v{T+1}")
        A("s_nop 0")
        A(f"v_max_f32 v{T}, v{T}, v{T+1}")
        A(f"v_sub_f32 v{T+2}, v{M}, v{T}")
        A(f"v_mul_f32 v{T+2}, s40, v{T+2}")
        A(f"v_mul_f32 v{NMC}, s44, v{T}")
        A(f"v_exp_f32 v{ALPHA}, v{T+2}")
        A(f"v_mov_b32 v{M}, v{T}")
        A(f"v_add_f32 v{MTH}, s45, v{T}")
        A(f"v_pk_mul_f32 v[{LS2}:{LS2+1}], v[{LS2}:{LS2+1}], v[{ALPHA}:{ALPHA+1}] op_sel_hi:[1,0]")
        for i in range(0, 64, 2):
            A(f"v_pk_mul_f32 v[{O+i}:{O+i+1}], v[{O+i}:{O+i+1}], v[{ALPHA}:{ALPHA+1}] op_sel_hi:[1,0]")
        if LAZY: A(f"L_nr{u}:")
        if PK:
            for r in range(0, 16, 2):
                A(f"v_pk_fma_f32 v[{S+r}:{S+r+1}], v[{S+r}:{S+r+1}], s[40:41], v[{NMC}:{NMC+1}] op_sel_hi:[1,1,0]")
        else:
            for r in range(16):
                A(f"v_fma_f32 v{S+r}, v{S+r}, s40, v{NMC}")
        for r in range(16):
            A(f"v_exp_f32 v{S+r}, v{S+r}")
        pt(2)
        for k in range(8):
            A(f"v_cvt_pk_bf16_f32 v{P+k}, v{S+2*k}, v{S+2*k+1}")
        for i in range(4):
            A(f"v_pk_add_f32 v[{T+2*i}:{T+2*i+1}], v[{S+4*i}:{S+4*i+1}], v[{S+4*i+2}:{S+4*i+3}]")
        A(f"v_pk_add_f32 v[{T}:{T+1}], v[{T}:{T+1}], v[{T+2}:{T+3}]")
        A(f"v_pk_add_f32 v[{T+4}:{T+5}], v[{T+4}:{T+5}], v[{T+6}:{T+7}]")
        nc = cst_reads(role)
        pt(3)
        A(f"s_waitcnt lgkmcnt({nc})")
        for s in range(2):
            for j in range(4):
                x = s*4+j
                A(f"v_mfma_f32_32x32x16_bf16 v[{O+16*j}:{O+16*j+15}], v[{KF+4*x}:{KF+4*x+3}], v[{P+4*s}:{P+4*s+3}], v[{O+16*j}:{O+16*j+15}]")
            if s==0:
                A(f"v_pk_add_f32 v[{T}:{T+1}], v[{T}:{T+1}], v[{T+4}:{T+5}]")
                A(f"v_pk_add_f32 v[{LS2}:{LS2+1}], v[{LS2}:{LS2+1}], v[{T}:{T+1}]")
        pt(4)

    def bar():
        A("s_waitcnt lgkmcnt(0)"); A("s_barrier")
    def setdeep():
        if PF & 2:
            uid[0]+=1
            A(f"s_cmp_lg_u32 s42, {PFAT}")
            A(f"s_cbranch_scc1 L_pf{uid[0]}")
            codepf()
            A(f"L_pf{uid[0]}:")
        A("s_cmp_gt_u32 s42, s61")
        A("s_cselect_b64 vcc, -1, 0")

    A("s_cmp_eq_u32 s39, 0")
    A("s_cbranch_scc0 L_V_entry")
    for role in ("K","V"):
        th = 0 if role=="K" else 1
        shifted = (role=="V" and SHIFT)
        A(f"L_{role}_entry:")
        for n in range(8): rawload(role, RA, n, False)
        A("s_lshl_b32 s43, s36, 15")
        A("s_lshl_b32 s57, s36, 14")
        srd(28, 10, 43, 32768)
        srd(32, 12, 43, 32768)
        srd(84, 14, 57, 16384)
        srd(48, 16, 57, 16384)
        srd(52, 4, 43, 32768)
        A("s_lshl_b32 s60, s59, 8")
        A(f"v_lshlrev_b32 v{T+4}, 4, v{VTID}")
        A(f"v_add_u32 v{T+4}, s60, v{T+4}")
        A("s_lshl_b32 s60, s59, 7")
        A(f"v_lshlrev_b32 v{T+5}, 3, v{VTID}")
        A(f"v_add_u32 v{T+5}, s60, v{T+5}")
        b = KF
        A(f"buffer_load_dwordx4 v[{b}:{b+3}], v{T+4}, s[28:31], 0 offen {nt}")
        A(f"buffer_load_dwordx4 v[{b+4}:{b+7}], v{T+4}, s[32:35], 0 offen {nt}")
        A(f"buffer_load_dwordx2 v[{b+8}:{b+9}], v{T+5}, s[84:87], 0 offen {nt}")
        A(f"buffer_load_dwordx2 v[{b+10}:{b+11}], v{T+5}, s[48:51], 0 offen {nt}")
        if role=="K":
            A(f"s_cmp_ge_u32 s3, {(NROW-32)//4}")
            A("s_cbranch_scc1 L_skip_l1")
            A(f"v_add_u32 v{T+4}, 8192, v{T+4}")
            A(f"v_add_u32 v{T+5}, 4096, v{T+5}")
            b = KF+12
            A(f"buffer_load_dwordx4 v[{b}:{b+3}], v{T+4}, s[28:31], 0 offen {nt}")
            A(f"buffer_load_dwordx4 v[{b+4}:{b+7}], v{T+4}, s[32:35], 0 offen {nt}")
            A(f"buffer_load_dwordx2 v[{b+8}:{b+9}], v{T+5}, s[84:87], 0 offen {nt}")
            A(f"buffer_load_dwordx2 v[{b+10}:{b+11}], v{T+5}, s[48:51], 0 offen {nt}")
            A("L_skip_l1:")
        A(f"v_lshlrev_b32 v{T+2}, 4, v{VLANE}")
        A("s_lshl_b32 s60, s3, 12")
        A(f"v_add_u32 v{T+2}, s60, v{T+2}")
        for n in range(4):
            A(f"buffer_load_dwordx4 v[{Q+4*n}:{Q+4*n+3}], v{T+2}, s[52:55], 0 offen offset:{n*1024} {nt}")
        NB0 = 4
        for n in range(NB0): rawload(role, RB, n, False)
        stamp(4)
        A(f"s_mov_b32 s40, {f32bits(C_SCALE):#x}")
        A(f"s_mov_b32 s41, {f32bits(C_SCALE):#x}")
        A(f"s_mov_b32 s44, {f32bits(-C_SCALE):#x}")
        A(f"s_mov_b32 s45, {f32bits(TH):#x}")
        if stamps == 2:
            A("s_lshr_b32 s56, s36, 4"); A("s_lshl_b32 s56, s56, 2"); A("s_add_u32 s56, s56, 240")
            A("s_and_b32 s91, s36, 15"); A("s_lshl_b32 s91, s91, 1"); A("s_lshl_b32 s92, 1, s91"); A("s_mov_b32 s93, 0")
        else:
            A("s_lshl_b32 s56, s36, 2")
        A("s_add_u32 s62, s20, s56"); A("s_addc_u32 s63, s21, 0")
        A("s_lshl_b32 s60, s39, 5")
        A(f"v_add_u32 v{T+3}, s60, v{VL32}")
        A(f"v_mul_lo_u32 v{VKRD}, v{T+3}, s80")
        A(f"v_lshl_add_u32 v{VKRD}, v{VH}, 4, v{VKRD}")
        A("s_lshl_b32 s60, s39, 13")
        A(f"v_lshlrev_b32 v{VVRD}, 4, v{VLANE}")
        A(f"v_add_u32 v{VVRD}, s60, v{VVRD}")
        if role=="K":
            A("s_lshl_b32 s60, s38, 4")
            A(f"v_add_u32 v{T+3}, s60, v{VH}")
            A(f"v_mul_lo_u32 v{VWR}, v{T+3}, s80")
            A(f"v_lshl_add_u32 v{VWR}, v{VL32}, 3, v{VWR}")
            A(f"v_lshlrev_b32 v{VCST}, 4, v{VL32}")
            A(f"v_add_u32 v{VCST}, {KC}, v{VCST}")
        else:
            A("s_lshl_b32 s60, s38, 12")
            A(f"v_lshlrev_b32 v{VWR}, 4, v{VLANE}")
            A(f"v_add_u32 v{VWR}, s60, v{VWR}")
            A("s_lshl_b32 s60, s38, 7")
            A(f"s_add_u32 s60, s60, {VC}")
            A(f"v_lshlrev_b32 v{VCST}, 5, v{VH}")
            A(f"v_add_u32 v{VCST}, s60, v{VCST}")
        for i in range(64): A(f"v_mov_b32 v{O+i}, 0")
        A(f"v_mov_b32 v{M}, {f32bits(-3.0e38):#x}")
        A(f"v_mov_b32 v{MTH}, {f32bits(-3.0e38):#x}")
        A(f"v_mov_b32 v{NMC}, 0")
        A(f"v_mov_b32 v{LS2}, 0"); A(f"v_mov_b32 v{LS2+1}, 0")
        A(f"v_lshrrev_b32 v{T}, 4, v{VTID}")
        A(f"v_and_b32 v{T+1}, 15, v{VTID}")
        A(f"v_lshlrev_b32 v{VX}, 10, v{T}")
        A(f"v_lshl_add_u32 v{VX}, v{T+1}, 5, v{VX}")
        A(f"v_add_u32 v{VX}, {KC}, v{VX}")
        A(f"v_lshlrev_b32 v{VX+1}, 5, v{VTID}")
        A(f"v_add_u32 v{VX+1}, {VC}, v{VX+1}")
        A(f"v_lshrrev_b32 v{T}, 4, v{VLANE}")
        A("s_lshl_b32 s60, s3, 4")
        A(f"v_add_u32 v{T}, s60, v{T}")
        A(f"v_mul_lo_u32 v{VX+2}, v{T}, s80")
        A(f"v_lshl_add_u32 v{VX+2}, v{T+1}, 4, v{VX+2}")
        A(f"v_add_u32 v{VX+2}, {QL}, v{VX+2}")
        A("s_lshl_b32 s60, s38, 5")
        A(f"v_add_u32 v{T}, s60, v{VL32}")
        A(f"v_mul_lo_u32 v{VX+3}, v{T}, s80")
        A(f"v_lshl_add_u32 v{VX+3}, v{VH}, 4, v{VX+3}")
        A(f"v_add_u32 v{VX+3}, {QL}, v{VX+3}")
        A(f"s_waitcnt vmcnt({NB0})")
        stamp(5)
        kconst(KF); kwrite(0); rawload(role, RB, 4); vconst(KF, 0)
        for n in range(4):
            A(f"ds_write_b128 v{VX+2}, v[{Q+4*n}:{Q+4*n+3}] offset:{n*4*272}")
        if role=="K":
            A(f"s_cmp_ge_u32 s3, {(NROW-32)//4}")
            A("s_cbranch_scc1 L_skip_p1")
            kconst(KF+12); kwrite(32768); vconst(KF+12, 16384)
            A("L_skip_p1:")
        rawload(role, RB, 5)
        bar()
        stamp(1)
        for s in range(8):
            A(f"ds_read_b128 v[{Q+4*s}:{Q+4*s+3}], v{VX+3} offset:{s*32}")
        cst_reads(role)
        produce(role, RA, 0, {1:[(RB,6)], 3:[(RB,7)]}, 6)
        if shifted:
            cst_reads(role)
            for n in range(4): rawload(role, RA, n)
        bar()
        stamp(2)
        A(f"L_{role}_loop:")
        for par in range(2):
            Rc = (RA, RB)[par]
            Rn = (RB, RA)[par]
            setdeep()
            if not shifted:
                burst(role, [(Rc, n) for n in range(8)])
                consume(role, par, {0:[(Rc,0)], 1:[(Rc,1)], 2:[(Rc,2)], 3:[(Rc,3)], 4:[(Rc,4)]})
                A("s_sub_u32 s42, s42, 1")
                A("s_cmp_eq_u32 s42, 0")
                A(f"s_cbranch_scc1 L_{role}_epi")
                produce(role, Rn, 1-par, {1:[(Rc,5)], 3:[(Rc,6)], 4:[(Rc,7)]}, (5,8))
                bar()
            else:
                A("s_cmp_eq_u32 s42, 1")
                A(f"s_cbranch_scc1 L_{role}_last{par}")
                produce(role, Rn, 1-par, {0:[(Rc,4)], 2:[(Rc,5)], 4:[(Rc,6)]}, 4, pre=[(Rc, n) for n in range(4,8)])
                burst(role, [(Rn, n) for n in range(4)])
                consume(role, par, {0:[(Rc,7)], 1:[(Rn,0)], 2:[(Rn,1)], 3:[(Rn,2)], 4:[(Rn,3)]})
                A("s_sub_u32 s42, s42, 1")
                bar()
        A(f"s_branch L_{role}_loop")
        if shifted:
            for par in range(2):
                A(f"L_{role}_last{par}:")
                A("s_waitcnt lgkmcnt(0)")
                consume(role, par, {})
                if par==0: A(f"s_branch L_{role}_epi")
        A(f"L_{role}_epi:")
        A("s_waitcnt vmcnt(0) lgkmcnt(0)")
        stamp(3)
        A(f"v_mov_b32 v{VX}, 0")
        if role=="K":
            A("s_cmp_lg_u32 s3, 0")
            A("s_cbranch_scc1 L_e0")
            A(f"global_load_dword v{VX+1}, v{VX}, s[62:63] sc1")
            A("L_e0:")
        A(f"v_add_f32 v{LT}, v{LS2}, v{LS2+1}")
        A(f"v_mov_b32 v{T}, v{LT}")
        A("s_nop 1")
        A(f"v_permlane32_swap_b32 v{LT}, v{T}")
        A("s_nop 0")
        A(f"v_add_f32 v{LT}, v{LT}, v{T}")
        A(f"s_mul_i32 s56, s3, {SLOT}"); A(f"s_add_u32 s56, s56, {KC}")
        A("s_xor_b32 s58, s3, 4")
        A(f"s_mul_i32 s57, s58, {SLOT}"); A(f"s_add_u32 s57, s57, {KC}")
        A(f"v_lshlrev_b32 v{T+1}, 4, v{VLANE}")
        A(f"v_add_u32 v{T+2}, s56, v{T+1}")
        A(f"v_add_u32 v{T+3}, s57, v{T+1}")
        A(f"v_lshlrev_b32 v{T+1}, 3, v{VLANE}")
        A(f"v_add_u32 v{T+4}, s56, v{T+1}")
        A(f"v_add_u32 v{T+5}, s57, v{T+1}")
        A(f"v_mov_b32 v{VX+3}, {MBX}")
        A("s_lshl_b32 s56, s36, 5"); A("s_add_u32 s56, s56, s3")
        A(f"s_mul_i32 s56, s56, {WSLOT}")
        srd(28, 22, 56, WSLOT*25)
        A("s_nop 3")
        k=0
        for j in range(4):
            for hh in range(2):
                r = O+16*j+8*(1-th)+4*hh
                A(f"ds_write_b128 v{T+2}, v[{r}:{r+3}] offset:{k*1024}")
                k+=1
        A(f"ds_write_b64 v{T+4}, v[{M}:{M+1}] offset:8192")
        if role=="K":
            A("s_cmp_lg_u32 s3, 0")
            A("s_cbranch_scc1 L_e1")
            A("s_waitcnt vmcnt(0)")
            A(f"ds_write_b32 v{VX+3}, v{VX+1}")
            A("L_e1:")
        A("s_waitcnt lgkmcnt(0)"); A("s_barrier")
        A(f"ds_read_b32 v{VX+1}, v{VX+3}")
        for k in range(8):
            A(f"ds_read_b128 v[{KF+4*k}:{KF+4*k+3}], v{T+3} offset:{k*1024}")
        A(f"ds_read_b64 v[{VX+4}:{VX+5}], v{T+5} offset:8192")
        A("s_waitcnt lgkmcnt(9)")
        A(f"v_readfirstlane_b32 s58, v{VX+1}")
        def pload():
            A(f"v_lshlrev_b32 v{T}, 4, v{VLANE}")
            A(f"v_lshlrev_b32 v{T+1}, 3, v{VLANE}")
            for t in range(3):
                A(f"s_add_u32 s56, s37, {t+1}"); A("s_and_b32 s56, s56, 3"); A(f"s_mul_i32 s{94+t}, s56, {8*WSLOT}")
                A(f"v_add_u32 v{VX+2}, s{94+t}, v{T+1}")
                A(f"buffer_load_dwordx2 v[{P+2*t}:{P+2*t+1}], v{VX+2}, s[28:31], 0 offen offset:4092 sc1".replace("offset:4092", "offset:4080") if False else f"v_add_u32 v{VX+2}, 4096, v{VX+2}")
                A(f"buffer_load_dwordx2 v[{P+2*t}:{P+2*t+1}], v{VX+2}, s[28:31], 0 offen sc1")
            for t in range(3):
                A(f"v_add_u32 v{VX}, s{94+t}, v{T}")
                for k in range(4):
                    r = RA+16*t+4*k
                    A(f"buffer_load_dwordx4 v[{r}:{r+3}], v{VX}, s[28:31], 0 offen offset:{k*1024} sc1")
        A("s_cmp_lt_u32 s58, 3")
        A(f"s_cbranch_scc1 L_{role}_nold")
        stamp(6)
        pload()
        A(f"L_{role}_nold:")
        A("s_waitcnt lgkmcnt(0)")
        A(f"v_max_f32 v{T}, v{M}, v{VX+4}")
        A(f"v_sub_f32 v{T+2}, v{M}, v{T}")
        A(f"v_sub_f32 v{T+4}, v{VX+4}, v{T}")
        A(f"v_mul_f32 v{T+2}, s40, v{T+2}")
        A(f"v_mul_f32 v{T+4}, s40, v{T+4}")
        A(f"v_exp_f32 v{T+2}, v{T+2}")
        A(f"v_exp_f32 v{T+4}, v{T+4}")
        A(f"v_mov_b32 v{M}, v{T}")
        A(f"v_mul_f32 v{LT}, v{LT}, v{T+2}")
        A(f"v_fmac_f32 v{LT}, v{VX+5}, v{T+4}")
        keep = [O+16*j+8*th+4*hh+c for j in range(4) for hh in range(2) for c in range(4)]
        for idx in range(0, 32, 2):
            r = keep[idx]
            A(f"v_pk_mul_f32 v[{r}:{r+1}], v[{r}:{r+1}], v[{T+2}:{T+3}] op_sel_hi:[1,0]")
            A(f"v_pk_fma_f32 v[{r}:{r+1}], v[{KF+idx}:{KF+idx+1}], v[{T+4}:{T+5}], v[{r}:{r+1}] op_sel_hi:[1,0,1]")
        A("s_cmp_ge_u32 s58, 3")
        A(f"s_cbranch_scc1 L_{role}_comb")
        A(f"s_mul_i32 s56, s37, {8*WSLOT}")
        A(f"v_lshlrev_b32 v{T}, 4, v{VLANE}")
        A(f"v_add_u32 v{T}, s56, v{T}")
        A(f"v_lshlrev_b32 v{T+2}, 3, v{VLANE}")
        A(f"v_add_u32 v{T+2}, s56, v{T+2}")
        A(f"v_add_u32 v{T+2}, 4096, v{T+2}")
        A(f"buffer_store_dwordx2 v[{M}:{M+1}], v{T+2}, s[28:31], 0 offen sc1")
        for k in range(4):
            for c in range(4):
                r = keep[8*k+2*c]
                A(f"v_cvt_pk_bf16_f32 v{KF+4*k+c}, v{r}, v{r+1}")
            A(f"buffer_store_dwordx4 v[{KF+4*k}:{KF+4*k+3}], v{T}, s[28:31], 0 offen offset:{k*1024} sc1")
        A("s_waitcnt vmcnt(0)")
        A("s_barrier")
        if role=="K":
            A("s_cmp_lg_u32 s3, 0")
            A("s_cbranch_scc1 L_e2")
            A("s_mov_b32 s58, 1")
            A("s_atomic_add s58, s[62:63], 0 glc")
            A("s_waitcnt lgkmcnt(0)")
            A(f"v_mov_b32 v{VX+1}, s58")
            A(f"ds_write_b32 v{VX+3}, v{VX+1} offset:4")
            A("s_waitcnt lgkmcnt(0)")
            A("L_e2:")
        A("s_barrier")
        A(f"ds_read_b32 v{VX+1}, v{VX+3} offset:4")
        A("s_waitcnt lgkmcnt(0)")
        A(f"v_readfirstlane_b32 s58, v{VX+1}")
        stamp(6)
        A("s_cmp_ge_u32 s58, 3")
        A(f"s_cbranch_scc1 L_{role}_late")
        if stamps: A("s_mov_b32 s37, 1")
        stamp_out()
        A("s_endpgm")
        A(f"L_{role}_late:")
        pload()
        A(f"L_{role}_comb:")
        srd(32, 18, 43, 32768)
        A("s_lshl_b32 s56, s38, 13")
        A(f"v_lshlrev_b32 v{VTID}, 8, v{VL32}")
        A(f"v_lshl_add_u32 v{VTID}, v{VH}, 5, v{VTID}")
        A(f"v_add_u32 v{VTID}, s56, v{VTID}")
        A("s_waitcnt vmcnt(12)")
        A(f"v_max3_f32 v{T}, v{M}, v{P}, v{P+2}")
        A(f"v_max_f32 v{T}, v{T}, v{P+4}")
        ms = [M, P, P+2, P+4]
        F = [VX, VX+2, VX+4, VX+6]
        for i, m in enumerate(ms):
            A(f"v_sub_f32 v{F[i]}, v{m}, v{T}")
        for i in range(4):
            A(f"v_mul_f32 v{F[i]}, s40, v{F[i]}")
        for i in range(4):
            A(f"v_exp_f32 v{F[i]}, v{F[i]}")
        A("s_nop 0")
        A(f"v_mul_f32 v{LT}, v{LT}, v{F[0]}")
        for i in range(3):
            A(f"v_fmac_f32 v{LT}, v{P+2*i+1}, v{F[1+i]}")
        A(f"v_rcp_f32 v{T}, v{LT}")
        A("s_nop 0")
        A(f"v_mul_f32 v{T}, 0x58000000, v{T}")
        for i in range(4):
            A(f"v_mul_f32 v{F[i]}, v{F[i]}, v{T}")
        for idx in range(0, 32, 2):
            r = keep[idx]
            A(f"v_pk_mul_f32 v[{r}:{r+1}], v[{r}:{r+1}], v[{F[0]}:{F[0]+1}] op_sel_hi:[1,0]")
        for t in range(3):
            A(f"s_waitcnt vmcnt({8-4*t})")
            for i in range(16):
                src = RA+16*t+i; tmp = KF+2*i
                A(f"v_lshlrev_b32 v{tmp}, 16, v{src}")
                A(f"v_and_b32 v{tmp+1}, 0xffff0000, v{src}")
            for i in range(16):
                r = keep[2*i]; tmp = KF+2*i
                A(f"v_pk_fma_f32 v[{r}:{r+1}], v[{tmp}:{tmp+1}], v[{F[1+t]}:{F[1+t]+1}], v[{r}:{r+1}] op_sel_hi:[1,0,1]")
        for a in range(2):
            for c in range(4):
                r = 8*th+4*a+c
                A(f"v_cvt_pk_bf16_f32 v{S+8*a+2*c}, v{O+r}, v{O+16+r}")
                A(f"v_cvt_pk_bf16_f32 v{S+8*a+2*c+1}, v{O+32+r}, v{O+48+r}")
            A(f"buffer_store_dwordx4 v[{S+8*a}:{S+8*a+3}], v{VTID}, s[32:35], 0 offen offset:{128*th+64*a}")
            A(f"buffer_store_dwordx4 v[{S+8*a+4}:{S+8*a+7}], v{VTID}, s[32:35], 0 offen offset:{128*th+64*a+16}")
        if stamps:
            A("s_waitcnt vmcnt(0)")
            stamp(7)
            A("s_mov_b32 s37, 0")
            stamp_out(1)
        A("s_endpgm")
    A("L_end:"); A("s_endpgm")
    A('.section .rodata,"a"'); A(".p2align 6"); A(f".amdhsa_kernel {KNAME}")
    A("  .amdhsa_next_free_vgpr 256"); A("  .amdhsa_next_free_sgpr 100"); A("  .amdhsa_accum_offset 256")
    A("  .amdhsa_float_denorm_mode_32 3")
    A("  .amdhsa_group_segment_fixed_size 0"); A("  .amdhsa_kernarg_size 80"); A("  .amdhsa_user_sgpr_count 2")
    A("  .amdhsa_user_sgpr_kernarg_segment_ptr 1"); A("  .amdhsa_system_sgpr_workgroup_id_x 1"); A(".end_amdhsa_kernel")
    open(name, "w").write("\n".join(L) + "\n")

if __name__ == "__main__":
    kw = {}
    for a in sys.argv[2:]:
        if a == "--stamps": kw["stamps"] = 1
        elif a == "--stamps2": kw["stamps"] = 2
        elif a.startswith("--"):
            k, v = a[2:].split("=")
            kw[k] = tuple(int(x) for x in v.split(",")) if "," in v else int(v)
    gen(sys.argv[1], **kw)
```

```python
import sys, struct, math
KNAME = "standalone__kv_cache_quant_int4_int2_kv_with_per_channel_or_per_token_scales__sampling_kernel"
HDR = open("standalone__kv_cache_quant_int4_int2_kv_with_per_channel_or_per_token_scales__sampling.s.ref").read().split("; Override")[0]

def f32bits(x): return struct.unpack("<I", struct.pack("<f", x))[0]

O=0; Q=64; S=96; KF=112; P=144; RA=152; RB=184
M=216; LT=217; LS2=218; NMC=220; MTH=221; ALPHA=222
T=224
VKRD=232; VVRD=233; VWR=234; VCSTB=235; VOFFA=236; VOFFB=237; VLANE=238; VTID=239; VL32=240; VH=241
VX=242
VOFF0=250; VCST=251; VMB=252; VMBA=253
STAGE=33792; KBYTES=17408
SLOT=8704
WSLOT=4608
C_SCALE = (128 ** -0.5) * math.log2(math.e) * 2.0**49
TH = 8.0 / C_SCALE

def gen(name, nt="nt", stamps=0, D=3, NS=31, EX=(2,1,1,0), CK=24):
    NX = sum(EX); X0 = 4*NS
    assert X0 + NX == 128 and CK + 2 <= NS - 3
    NROW = max(36, (NS+NX+3)//4*4)
    offs = [sum(EX[:r]) for r in range(4)]
    lut_n = sum(EX[r] << (4*r) for r in range(4)) | (15 << 16)
    lut_o = sum(offs[r] << (4*r) for r in range(4))
    assert max(offs) < 16 and max(EX) < 15
    QL=STAGE; KC=2*STAGE+1024; VC=KC+NROW*1024; MBX=KC+max(NROW*1536, 8*SLOT); LDS_TOTAL=MBX+64
    assert LDS_TOTAL <= 163840
    L=[]; A=L.append
    uid=[0]
    def stamp(i):
        if stamps: A(f"s_memrealtime s[{64+2*i}:{65+2*i}]")
    def stamp_out(val):
        if not stamps: return
        A("s_waitcnt lgkmcnt(0)")
        A("s_lshl_b32 s56, s2, 3"); A("s_add_u32 s56, s56, s3"); A("s_lshl_b32 s56, s56, 6"); A("s_add_u32 s56, s56, 0x4000000")
        A("s_add_u32 s28, s22, s56"); A("s_addc_u32 s29, s23, 0"); A("s_mov_b32 s30, 64"); A("s_mov_b32 s31, 0x20000")
        A("s_mov_b64 exec, 1")
        for i in range(8):
            A(f"v_mov_b32 v{i}, s{64+2*i}")
        A("v_mov_b32 v8, 0"); A(f"v_mov_b32 v9, {val}"); A("v_mov_b32 v10, s46")
        A("buffer_store_dwordx4 v[0:3], v8, s[28:31], 0 offen")
        A("buffer_store_dwordx4 v[4:7], v8, s[28:31], 0 offen offset:16")
        A("buffer_store_dword v9, v8, s[28:31], 0 offen offset:32")
        A("buffer_store_dword v10, v8, s[28:31], 0 offen offset:36")
    A(HDR.rstrip())
    A(f"; @launch grid=(256,1,1) block=(512,1,1) lds={LDS_TOTAL}")
    A('.amdgcn_target "amdgcn-amd-amdhsa--gfx950"')
    A(".text"); A(f".globl {KNAME}"); A(".p2align 8"); A(f".type {KNAME},@function"); A(f"{KNAME}:")
    A("s_cmp_ge_u32 s2, 256"); A("s_cbranch_scc1 L_end")
    for i in range(8): stamp(i)
    A("s_load_dwordx16 s[4:19], s[0:1], 0")
    A("s_load_dwordx4 s[20:23], s[0:1], 64")
    A(f"v_lshrrev_b32 v{T}, 6, v0")
    A(f"v_and_b32 v{VLANE}, 63, v0")
    A(f"v_mov_b32 v{VTID}, v0")
    A(f"v_readfirstlane_b32 s3, v{T}")
    A(f"v_and_b32 v{VL32}, 31, v0")
    A(f"v_bfe_u32 v{VH}, v0, 5, 1")
    A("s_lshr_b32 s36, s2, 2")
    A("s_and_b32 s37, s2, 3")
    A("s_and_b32 s38, s3, 3")
    A("s_lshr_b32 s39, s3, 2")
    A(f"s_mul_i32 s59, s37, {NS}")
    A("s_lshl_b32 s58, s36, 22")
    A("s_lshl_b32 s60, s38, 13")
    A("s_lshl_b32 s61, s59, 15")
    A("s_movk_i32 s80, 272")
    A("s_cmp_eq_u32 s39, 0")
    A("s_cbranch_scc0 L_v0")
    A(f"v_lshlrev_b32 v{VOFF0}, 4, v{VLANE}")
    A("s_branch L_v1")
    A("L_v0:")
    A(f"v_lshlrev_b32 v{VOFF0}, 4, v{VL32}")
    A(f"v_lshl_add_u32 v{VOFF0}, v{VH}, 11, v{VOFF0}")
    A("L_v1:")
    A(f"v_add_u32 v{VOFF0}, s60, v{VOFF0}")
    A(f"v_add_u32 v{VOFFA}, s61, v{VOFF0}")
    A(f"v_add_u32 v{VOFFB}, 4096, v{VOFFA}")
    A("s_waitcnt lgkmcnt(0)")
    A("s_cmp_eq_u32 s39, 0")
    A("s_cselect_b32 s24, s6, s8"); A("s_cselect_b32 s25, s7, s9")
    A("s_add_u32 s24, s24, s58"); A("s_addc_u32 s25, s25, 0")
    A("s_mov_b32 s26, 0x400000"); A("s_mov_b32 s27, 0x20000")
    def srd(d, p, off, size):
        A(f"s_add_u32 s{d}, s{p}, s{off}"); A(f"s_addc_u32 s{d+1}, s{p+1}, 0")
        A(f"s_mov_b32 s{d+2}, {size}"); A(f"s_mov_b32 s{d+3}, 0x20000")
    def rawload(role, Rr, n, wait=True, inc=False):
        step = 1024 if role=="K" else 512
        vo = VOFFA if n<4 else VOFFB
        if wait: A(f"s_waitcnt vmcnt({D-1})")
        A(f"buffer_load_dwordx4 v[{Rr+4*n}:{Rr+4*n+3}], v{vo}, s[24:27], 0 offen offset:{(n%4)*step} {nt}")
        if inc and n==3: A(f"v_add_u32 v{VOFFA}, 0x8000, v{VOFFA}")
        if inc and n==7: A(f"v_add_u32 v{VOFFB}, 0x8000, v{VOFFB}")

    def kconst(b):
        for i in range(4):
            A(f"v_lshlrev_b32 v{T}, 16, v{b+i}")
            A(f"v_and_b32 v{T+1}, 0xffff0000, v{b+i}")
            A(f"v_lshlrev_b32 v{T+2}, 16, v{b+4+i}")
            A(f"v_and_b32 v{T+3}, 0xffff0000, v{b+4+i}")
            A(f"v_mul_f32 v{S+2*i}, 0x71800000, v{T}")
            A(f"v_mul_f32 v{S+2*i+1}, 0x71800000, v{T+1}")
            A(f"v_mul_f32 v{T+2}, v{T+2}, v{T}")
            A(f"v_mul_f32 v{T+3}, v{T+3}, v{T+1}")
            A(f"v_mul_f32 v{S+8+2*i}, 0xa7000000, v{T+2}")
            A(f"v_mul_f32 v{S+8+2*i+1}, 0xa7000000, v{T+3}")
    def kwrite(o):
        A(f"ds_write_b128 v{VX}, v[{S}:{S+3}] offset:{o}")
        A(f"ds_write_b128 v{VX}, v[{S+4}:{S+7}] offset:{o+16}")
        A(f"ds_write_b128 v{VX}, v[{S+8}:{S+11}] offset:{o+512}")
        A(f"ds_write_b128 v{VX}, v[{S+12}:{S+15}] offset:{o+528}")
    def vconst(b, o):
        for i in range(2):
            A(f"v_lshlrev_b32 v{T+4}, 16, v{b+8+i}")
            A(f"v_and_b32 v{T+1}, 0xffff0000, v{b+8+i}")
            A(f"v_lshlrev_b32 v{T+2}, 16, v{b+10+i}")
            A(f"v_and_b32 v{T+3}, 0xffff0000, v{b+10+i}")
            A(f"v_mul_f32 v{P+2*i}, 0x71800000, v{T+4}")
            A(f"v_mul_f32 v{P+2*i+1}, 0x71800000, v{T+1}")
            A(f"v_mul_f32 v{T+2}, v{T+2}, v{T+4}")
            A(f"v_mul_f32 v{T+3}, v{T+3}, v{T+1}")
            A(f"v_mul_f32 v{P+4+2*i}, 0xa7000000, v{T+2}")
            A(f"v_mul_f32 v{P+4+2*i+1}, 0xa7000000, v{T+3}")
        A(f"ds_write_b128 v{VX+1}, v[{P}:{P+3}] offset:{o}")
        A(f"ds_write_b128 v{VX+1}, v[{P+4}:{P+7}] offset:{o+16}")

    def cst_reads(role, row):
        sh = 1024 if role=="K" else 512
        if row is not None:
            A(f"v_add_u32 v{VCST}, {row*sh}, v{VCSTB}")
        if role=="K":
            A(f"ds_read_b128 v[{S}:{S+3}], v{VCST}")
            A(f"ds_read_b128 v[{S+4}:{S+7}], v{VCST} offset:512")
            return 2
        else:
            A(f"ds_read_b128 v[{S}:{S+3}], v{VCST}")
            A(f"ds_read_b128 v[{S+4}:{S+7}], v{VCST} offset:16")
            A(f"ds_read_b128 v[{S+8}:{S+11}], v{VCST} offset:64")
            A(f"ds_read_b128 v[{S+12}:{S+15}], v{VCST} offset:80")
            return 4

    def produce(role, Rr, b, pts, vw, inloop=True, inc=False):
        kb = b*STAGE; vb = kb + KBYTES
        A(f"s_waitcnt vmcnt({vw}) lgkmcnt(0)")
        uid[0]+=1; u=uid[0]
        if role=="K" and inloop:
            A(f"s_cmp_lg_u32 s47, {CK}"); A(f"s_cbranch_scc1 L_ck{u}")
            A("s_movk_i32 s86, 0x100")
            A("s_atomic_add s86, s[62:63], 0 glc")
            A(f"L_ck{u}:")
        for p in range(4):
            for (Rl, n) in pts.get(p, []): rawload(role, Rl, n, inc=inc)
            if role=="K":
                for n in (2*p, 2*p+1):
                    r = Rr+4*n
                    A(f"v_pk_fma_f32 v[{r}:{r+1}], v[{r}:{r+1}], v[{S}:{S+1}], v[{S+4}:{S+5}]")
                    A(f"v_pk_fma_f32 v[{r+2}:{r+3}], v[{r+2}:{r+3}], v[{S+2}:{S+3}], v[{S+6}:{S+7}]")
                    A(f"v_cvt_pk_bf16_f32 v{KF+2*n}, v{r}, v{r+1}")
                    A(f"v_cvt_pk_bf16_f32 v{KF+2*n+1}, v{r+2}, v{r+3}")
                    A(f"ds_write_b64 v{VWR}, v[{KF+2*n}:{KF+2*n+1}] offset:{kb+n*544}")
            else:
                for i in (2*p, 2*p+1):
                    r = Rr+4*i
                    cs = S + (i//4)*8 + i%4; cc = cs+4
                    x = cs & 1; c0 = cs & ~1; c1 = cc & ~1
                    for jj in (0, 2):
                        A(f"v_pk_fma_f32 v[{r+jj}:{r+jj+1}], v[{r+jj}:{r+jj+1}], v[{c0}:{c0+1}], v[{c1}:{c1+1}] op_sel:[0,{x},{x}] op_sel_hi:[1,{x},{x}]")
                for j in range(4):
                    A(f"v_cvt_pk_bf16_f32 v{KF+4*j+p}, v{Rr+8*p+j}, v{Rr+8*p+4+j}")
        if role=="V":
            for j in range(4):
                A(f"ds_write_b128 v{VWR}, v[{KF+4*j}:{KF+4*j+3}] offset:{vb+j*1024}")
        for (Rl, n) in pts.get(4, []): rawload(role, Rl, n, inc=inc)
        if role=="K" and inloop:
            A(f"s_cmp_lg_u32 s47, {CK}"); A(f"s_cbranch_scc1 L_ck2{u}")
            A("s_waitcnt lgkmcnt(0)")
            A("s_lshr_b32 s86, s86, 8"); A("s_and_b32 s86, s86, 3")
            A(f"v_mov_b32 v{VMB}, s86")
            A(f"ds_write_b32 v{VMBA}, v{VMB} offset:8")
            A(f"L_ck2{u}:")

    def consume(role, b, pts):
        kb = b*STAGE; vb = kb + KBYTES
        def pt(k):
            for (Rl, n) in pts.get(k, []): rawload(role, Rl, n)
        A(f"ds_read_b32 v{VMB}, v{VMBA} offset:8")
        for s in range(8):
            A(f"ds_read_b128 v[{KF+4*s}:{KF+4*s+3}], v{VKRD} offset:{kb+s*32}")
        pt(0)
        for s in range(8):
            A(f"s_waitcnt lgkmcnt({7-s})")
            c = "0" if s==0 else f"v[{S}:{S+15}]"
            A(f"v_mfma_f32_32x32x16_bf16 v[{S}:{S+15}], v[{KF+4*s}:{KF+4*s+3}], v[{Q+4*s}:{Q+4*s+3}], {c}")
        for x in range(8):
            A(f"ds_read_b128 v[{KF+4*x}:{KF+4*x+3}], v{VVRD} offset:{vb+x*1024}")
        pt(1)
        A(f"v_readfirstlane_b32 s46, v{VMB}")
        A("s_nop 2")
        A(f"v_max3_f32 v{T}, v{S}, v{S+1}, v{S+2}")
        A(f"v_max3_f32 v{T+1}, v{S+3}, v{S+4}, v{S+5}")
        A(f"v_max3_f32 v{T+2}, v{S+6}, v{S+7}, v{S+8}")
        A(f"v_max3_f32 v{T+3}, v{S+9}, v{S+10}, v{S+11}")
        A(f"v_max3_f32 v{T}, v{T}, v{S+12}, v{S+13}")
        A(f"v_max3_f32 v{T+1}, v{T+1}, v{S+14}, v{S+15}")
        A(f"v_max3_f32 v{T}, v{T}, v{T+2}, v{T+3}")
        uid[0]+=1; u=uid[0]
        A(f"v_max_f32 v{T}, v{T}, v{T+1}")
        A(f"v_cmp_gt_f32 vcc, v{T}, v{MTH}")
        A("s_nop 1")
        A(f"s_cbranch_vccz L_nr{u}")
        A(f"v_max_f32 v{T}, v{T}, v{M}")
        A(f"v_mov_b32 v{T+1}, v{T}")
        A("s_nop 1")
        A(f"v_permlane32_swap_b32 v{T}, v{T+1}")
        A("s_nop 0")
        A(f"v_max_f32 v{T}, v{T}, v{T+1}")
        A(f"v_sub_f32 v{T+2}, v{M}, v{T}")
        A(f"v_mul_f32 v{T+2}, s40, v{T+2}")
        A(f"v_mul_f32 v{NMC}, s44, v{T}")
        A(f"v_exp_f32 v{ALPHA}, v{T+2}")
        A(f"v_mov_b32 v{M}, v{T}")
        A(f"v_add_f32 v{MTH}, s45, v{T}")
        A(f"v_pk_mul_f32 v[{LS2}:{LS2+1}], v[{LS2}:{LS2+1}], v[{ALPHA}:{ALPHA+1}] op_sel_hi:[1,0]")
        for i in range(0, 64, 2):
            A(f"v_pk_mul_f32 v[{O+i}:{O+i+1}], v[{O+i}:{O+i+1}], v[{ALPHA}:{ALPHA+1}] op_sel_hi:[1,0]")
        A(f"L_nr{u}:")
        for r in range(0, 16, 2):
            A(f"v_pk_fma_f32 v[{S+r}:{S+r+1}], v[{S+r}:{S+r+1}], s[40:41], v[{NMC}:{NMC+1}] op_sel_hi:[1,1,0]")
        for r in range(16):
            A(f"v_exp_f32 v{S+r}, v{S+r}")
        pt(2)
        for k in range(8):
            A(f"v_cvt_pk_bf16_f32 v{P+k}, v{S+2*k}, v{S+2*k+1}")
        for i in range(4):
            A(f"v_pk_add_f32 v[{T+2*i}:{T+2*i+1}], v[{S+4*i}:{S+4*i+1}], v[{S+4*i+2}:{S+4*i+3}]")
        A(f"v_pk_add_f32 v[{T}:{T+1}], v[{T}:{T+1}], v[{T+2}:{T+3}]")
        A(f"v_pk_add_f32 v[{T+4}:{T+5}], v[{T+4}:{T+5}], v[{T+6}:{T+7}]")
        nc = cst_reads(role, None)
        pt(3)
        A(f"s_waitcnt lgkmcnt({nc})")
        for s in range(2):
            for j in range(4):
                x = s*4+j
                A(f"v_mfma_f32_32x32x16_bf16 v[{O+16*j}:{O+16*j+15}], v[{KF+4*x}:{KF+4*x+3}], v[{P+4*s}:{P+4*s+3}], v[{O+16*j}:{O+16*j+15}]")
            if s==0:
                A(f"v_pk_add_f32 v[{T}:{T+1}], v[{T}:{T+1}], v[{T+4}:{T+5}]")
                A(f"v_pk_add_f32 v[{LS2}:{LS2+1}], v[{LS2}:{LS2+1}], v[{T}:{T+1}]")
        pt(4)

    def bar():
        A("s_waitcnt lgkmcnt(0)"); A("s_barrier")

    def sched(role):
        A("s_lshl_b32 s56, s46, 2")
        A(f"s_lshr_b32 s87, {lut_n:#x}, s56"); A("s_and_b32 s87, s87, 15")
        A(f"s_add_u32 s87, s87, {NS}")
        A(f"s_lshr_b32 s88, {lut_o:#x}, s56"); A("s_and_b32 s88, s88, 15")
        A("s_sub_u32 s90, s87, s42")
        A(f"s_add_u32 s89, s88, {X0-NS}")
        def tile(delta, vdst, extra):
            A(f"s_add_u32 s91, s42, {delta}")
            A(f"s_cmp_lt_u32 s91, {NS}")
            A("s_cselect_b32 s92, s59, s89")
            A("s_add_u32 s92, s92, s91")
            A("s_cmp_lt_u32 s91, s87")
            A("s_cselect_b32 s92, s92, 0x4000")
            A("s_lshl_b32 s92, s92, 15")
            if extra: A(f"s_add_u32 s92, s92, {extra}")
            A(f"v_add_u32 v{vdst}, s92, v{VOFF0}")
        if role=="K":
            tile(2, VOFFA, 0)
            A(f"v_add_u32 v{VOFFB}, 4096, v{VOFFA}")
            dr = 1
        else:
            tile(2, VOFFB, 4096)
            tile(3, VOFFA, 0)
            dr = 2
        A(f"s_add_u32 s91, s42, {dr}")
        A(f"s_cmp_lt_u32 s91, {NS}")
        A("s_cselect_b32 s93, 0, s88")
        A("s_add_u32 s93, s93, s91")
        A(f"s_min_u32 s93, s93, {NROW-1}")
        A(f"s_lshl_b32 s93, s93, {10 if role=='K' else 9}")
        A(f"v_add_u32 v{VCST}, s93, v{VCSTB}")

    A("s_cmp_eq_u32 s39, 0")
    A("s_cbranch_scc0 L_V_entry")
    for role in ("K","V"):
        th = 0 if role=="K" else 1
        shifted = (role=="V")
        A(f"L_{role}_entry:")
        for n in range(8): rawload(role, RA, n, False, inc=True)
        A("s_lshl_b32 s43, s36, 15")
        A("s_lshl_b32 s57, s36, 14")
        srd(28, 10, 43, 32768)
        srd(32, 12, 43, 32768)
        srd(84, 14, 57, 16384)
        srd(48, 16, 57, 16384)
        srd(52, 4, 43, 32768)
        A(f"v_lshrrev_b32 v{T}, 4, v{VTID}")
        A(f"v_and_b32 v{T+1}, 15, v{VTID}")
        A(f"v_mov_b32 v{T+2}, {X0-NS}")
        A(f"v_mov_b32 v{T+3}, s59")
        A(f"v_cmp_gt_u32 vcc, {NS}, v{T}")
        A("s_nop 1")
        A(f"v_cndmask_b32 v{T+2}, v{T+2}, v{T+3}, vcc")
        A(f"v_add_u32 v{T+2}, v{T+2}, v{T}")
        A(f"v_lshlrev_b32 v{T+4}, 8, v{T+2}")
        A(f"v_lshl_add_u32 v{T+4}, v{T+1}, 4, v{T+4}")
        A(f"v_lshlrev_b32 v{T+5}, 7, v{T+2}")
        A(f"v_lshl_add_u32 v{T+5}, v{T+1}, 3, v{T+5}")
        b = KF
        A(f"buffer_load_dwordx4 v[{b}:{b+3}], v{T+4}, s[28:31], 0 offen {nt}")
        A(f"buffer_load_dwordx4 v[{b+4}:{b+7}], v{T+4}, s[32:35], 0 offen {nt}")
        A(f"buffer_load_dwordx2 v[{b+8}:{b+9}], v{T+5}, s[84:87], 0 offen {nt}")
        A(f"buffer_load_dwordx2 v[{b+10}:{b+11}], v{T+5}, s[48:51], 0 offen {nt}")
        if role=="K":
            A(f"s_cmp_ge_u32 s3, {(NROW-32)//4}")
            A("s_cbranch_scc1 L_skip_l1")
            A(f"v_add_u32 v{T+2}, {X0-NS+32}, v{T}")
            A(f"v_lshlrev_b32 v{T+4}, 8, v{T+2}")
            A(f"v_lshl_add_u32 v{T+4}, v{T+1}, 4, v{T+4}")
            A(f"v_lshlrev_b32 v{T+5}, 7, v{T+2}")
            A(f"v_lshl_add_u32 v{T+5}, v{T+1}, 3, v{T+5}")
            b = KF+12
            A(f"buffer_load_dwordx4 v[{b}:{b+3}], v{T+4}, s[28:31], 0 offen {nt}")
            A(f"buffer_load_dwordx4 v[{b+4}:{b+7}], v{T+4}, s[32:35], 0 offen {nt}")
            A(f"buffer_load_dwordx2 v[{b+8}:{b+9}], v{T+5}, s[84:87], 0 offen {nt}")
            A(f"buffer_load_dwordx2 v[{b+10}:{b+11}], v{T+5}, s[48:51], 0 offen {nt}")
            A("L_skip_l1:")
        A(f"v_lshlrev_b32 v{T+2}, 4, v{VLANE}")
        A("s_lshl_b32 s60, s3, 12")
        A(f"v_add_u32 v{T+2}, s60, v{T+2}")
        for n in range(4):
            A(f"buffer_load_dwordx4 v[{Q+4*n}:{Q+4*n+3}], v{T+2}, s[52:55], 0 offen offset:{n*1024} {nt}")
        NB0 = 4
        for n in range(NB0): rawload(role, RB, n, False, inc=True)
        stamp(4)
        A(f"s_mov_b32 s40, {f32bits(C_SCALE):#x}")
        A(f"s_mov_b32 s41, {f32bits(C_SCALE):#x}")
        A(f"s_mov_b32 s44, {f32bits(-C_SCALE):#x}")
        A(f"s_mov_b32 s45, {f32bits(TH):#x}")
        A("s_lshl_b32 s56, s36, 2")
        A("s_add_u32 s62, s20, s56"); A("s_addc_u32 s63, s21, 0")
        A("s_mov_b32 s42, 0"); A("s_mov_b32 s46, 4")
        A("s_cmp_eq_u32 s3, 0"); A("s_cselect_b32 s81, 0, 0x100")
        A("s_lshl_b32 s60, s39, 5")
        A(f"v_add_u32 v{T+3}, s60, v{VL32}")
        A(f"v_mul_lo_u32 v{VKRD}, v{T+3}, s80")
        A(f"v_lshl_add_u32 v{VKRD}, v{VH}, 4, v{VKRD}")
        A("s_lshl_b32 s60, s39, 13")
        A(f"v_lshlrev_b32 v{VVRD}, 4, v{VLANE}")
        A(f"v_add_u32 v{VVRD}, s60, v{VVRD}")
        if role=="K":
            A("s_lshl_b32 s60, s38, 4")
            A(f"v_add_u32 v{T+3}, s60, v{VH}")
            A(f"v_mul_lo_u32 v{VWR}, v{T+3}, s80")
            A(f"v_lshl_add_u32 v{VWR}, v{VL32}, 3, v{VWR}")
            A(f"v_lshlrev_b32 v{VCSTB}, 4, v{VL32}")
            A(f"v_add_u32 v{VCSTB}, {KC}, v{VCSTB}")
        else:
            A("s_lshl_b32 s60, s38, 12")
            A(f"v_lshlrev_b32 v{VWR}, 4, v{VLANE}")
            A(f"v_add_u32 v{VWR}, s60, v{VWR}")
            A("s_lshl_b32 s60, s38, 7")
            A(f"s_add_u32 s60, s60, {VC}")
            A(f"v_lshlrev_b32 v{VCSTB}, 5, v{VH}")
            A(f"v_add_u32 v{VCSTB}, s60, v{VCSTB}")
        for i in range(64): A(f"v_mov_b32 v{O+i}, 0")
        A(f"v_mov_b32 v{M}, {f32bits(-3.0e38):#x}")
        A(f"v_mov_b32 v{MTH}, {f32bits(-3.0e38):#x}")
        A(f"v_mov_b32 v{NMC}, 0")
        A(f"v_mov_b32 v{LS2}, 0"); A(f"v_mov_b32 v{LS2+1}, 0")
        A(f"v_mov_b32 v{VMBA}, {MBX}")
        A(f"v_mov_b32 v{VMB}, 4")
        A(f"ds_write_b32 v{VMBA}, v{VMB} offset:8")
        A(f"v_lshlrev_b32 v{VX}, 10, v{T}")
        A(f"v_lshl_add_u32 v{VX}, v{T+1}, 5, v{VX}")
        A(f"v_add_u32 v{VX}, {KC}, v{VX}")
        A(f"v_lshlrev_b32 v{VX+1}, 5, v{VTID}")
        A(f"v_add_u32 v{VX+1}, {VC}, v{VX+1}")
        A(f"v_lshrrev_b32 v{T}, 4, v{VLANE}")
        A("s_lshl_b32 s60, s3, 4")
        A(f"v_add_u32 v{T}, s60, v{T}")
        A(f"v_mul_lo_u32 v{VX+2}, v{T}, s80")
        A(f"v_lshl_add_u32 v{VX+2}, v{T+1}, 4, v{VX+2}")
        A(f"v_add_u32 v{VX+2}, {QL}, v{VX+2}")
        A("s_lshl_b32 s60, s38, 5")
        A(f"v_add_u32 v{T}, s60, v{VL32}")
        A(f"v_mul_lo_u32 v{VX+3}, v{T}, s80")
        A(f"v_lshl_add_u32 v{VX+3}, v{VH}, 4, v{VX+3}")
        A(f"v_add_u32 v{VX+3}, {QL}, v{VX+3}")
        A(f"s_waitcnt vmcnt({NB0})")
        stamp(5)
        kconst(KF); kwrite(0); rawload(role, RB, 4); vconst(KF, 0)
        for n in range(4):
            A(f"ds_write_b128 v{VX+2}, v[{Q+4*n}:{Q+4*n+3}] offset:{n*4*272}")
        if role=="K":
            A(f"s_cmp_ge_u32 s3, {(NROW-32)//4}")
            A("s_cbranch_scc1 L_skip_p1")
            kconst(KF+12); kwrite(32768); vconst(KF+12, 16384)
            A("L_skip_p1:")
        rawload(role, RB, 5)
        bar()
        stamp(1)
        for s in range(8):
            A(f"ds_read_b128 v[{Q+4*s}:{Q+4*s+3}], v{VX+3} offset:{s*32}")
        cst_reads(role, 0)
        produce(role, RA, 0, {1:[(RB,6)], 3:[(RB,7)]}, 6, inloop=False)
        if shifted:
            cst_reads(role, 1)
            for n in range(4): rawload(role, RA, n)
        bar()
        stamp(2)
        A(f"L_{role}_loop:")
        for par in range(2):
            Rc = (RA, RB)[par]; Rn = (RB, RA)[par]
            sched(role)
            if not shifted:
                consume(role, par, {0:[(Rc,0)], 1:[(Rc,1)], 2:[(Rc,2)], 3:[(Rc,3)], 4:[(Rc,4)]})
                A("s_cmp_eq_u32 s90, 1")
                A(f"s_cbranch_scc1 L_{role}_epi")
                A("s_or_b32 s47, s42, s81")
                A("s_add_u32 s42, s42, 1")
                produce(role, Rn, 1-par, {1:[(Rc,5)], 3:[(Rc,6)], 4:[(Rc,7)]}, 5)
                bar()
            else:
                A("s_cmp_eq_u32 s90, 1")
                A(f"s_cbranch_scc1 L_{role}_last{par}")
                A("s_add_u32 s42, s42, 1")
                produce(role, Rn, 1-par, {0:[(Rc,4)], 2:[(Rc,5)], 4:[(Rc,6)]}, 4)
                consume(role, par, {0:[(Rc,7)], 1:[(Rn,0)], 2:[(Rn,1)], 3:[(Rn,2)], 4:[(Rn,3)]})
                bar()
        A(f"s_branch L_{role}_loop")
        if shifted:
            for par in range(2):
                A(f"L_{role}_last{par}:")
                consume(role, par, {})
                if par==0: A(f"s_branch L_{role}_epi")
        A(f"L_{role}_epi:")
        A("s_waitcnt vmcnt(0) lgkmcnt(0)")
        stamp(3)
        A(f"v_mov_b32 v{VX}, 0")
        if role=="K":
            A("s_cmp_lg_u32 s3, 0")
            A("s_cbranch_scc1 L_e0")
            A(f"global_load_dword v{VX+1}, v{VX}, s[62:63] sc1")
            A("L_e0:")
        A(f"v_add_f32 v{LT}, v{LS2}, v{LS2+1}")
        A(f"v_mov_b32 v{T}, v{LT}")
        A("s_nop 1")
        A(f"v_permlane32_swap_b32 v{LT}, v{T}")
        A("s_nop 0")
        A(f"v_add_f32 v{LT}, v{LT}, v{T}")
        A(f"s_mul_i32 s56, s3, {SLOT}"); A(f"s_add_u32 s56, s56, {KC}")
        A("s_xor_b32 s58, s3, 4")
        A(f"s_mul_i32 s57, s58, {SLOT}"); A(f"s_add_u32 s57, s57, {KC}")
        A(f"v_lshlrev_b32 v{T+1}, 4, v{VLANE}")
        A(f"v_add_u32 v{T+2}, s56, v{T+1}")
        A(f"v_add_u32 v{T+3}, s57, v{T+1}")
        A(f"v_lshlrev_b32 v{T+1}, 3, v{VLANE}")
        A(f"v_add_u32 v{T+4}, s56, v{T+1}")
        A(f"v_add_u32 v{T+5}, s57, v{T+1}")
        A("s_lshl_b32 s56, s36, 5"); A("s_add_u32 s56, s56, s3")
        A(f"s_mul_i32 s56, s56, {WSLOT}")
        srd(28, 22, 56, WSLOT*25)
        A("s_nop 3")
        k=0
        for j in range(4):
            for hh in range(2):
                r = O+16*j+8*(1-th)+4*hh
                A(f"ds_write_b128 v{T+2}, v[{r}:{r+3}] offset:{k*1024}")
                k+=1
        A(f"ds_write_b64 v{T+4}, v[{M}:{M+1}] offset:8192")
        if role=="K":
            A("s_cmp_lg_u32 s3, 0")
            A("s_cbranch_scc1 L_e1")
            A("s_waitcnt vmcnt(0)")
            A(f"ds_write_b32 v{VMBA}, v{VX+1}")
            A("L_e1:")
        A("s_waitcnt lgkmcnt(0)"); A("s_barrier")
        A(f"ds_read_b32 v{VX+1}, v{VMBA}")
        for k in range(8):
            A(f"ds_read_b128 v[{KF+4*k}:{KF+4*k+3}], v{T+3} offset:{k*1024}")
        A(f"ds_read_b64 v[{VX+4}:{VX+5}], v{T+5} offset:8192")
        A("s_waitcnt lgkmcnt(9)")
        A(f"v_readfirstlane_b32 s58, v{VX+1}")
        def pload():
            A(f"v_lshlrev_b32 v{T}, 4, v{VLANE}")
            A(f"v_lshlrev_b32 v{T+1}, 3, v{VLANE}")
            A(f"v_add_u32 v{T+1}, 4096, v{T+1}")
            for t in range(3):
                A(f"s_add_u32 s56, s37, {t+1}"); A("s_and_b32 s56, s56, 3"); A(f"s_mul_i32 s{94+t}, s56, {8*WSLOT}")
                A(f"v_add_u32 v{VX+2}, s{94+t}, v{T+1}")
                A(f"buffer_load_dwordx2 v[{P+2*t}:{P+2*t+1}], v{VX+2}, s[28:31], 0 offen sc1")
            for t in range(3):
                A(f"v_add_u32 v{VX}, s{94+t}, v{T}")
                for k in range(4):
                    r = RA+16*t+4*k
                    A(f"buffer_load_dwordx4 v[{r}:{r+3}], v{VX}, s[28:31], 0 offen offset:{k*1024} sc1")
        A("s_and_b32 s58, s58, 0xff")
        A("s_cmp_lt_u32 s58, 3")
        A(f"s_cbranch_scc1 L_{role}_nold")
        stamp(6)
        pload()
        A(f"L_{role}_nold:")
        A("s_waitcnt lgkmcnt(0)")
        A(f"v_max_f32 v{T}, v{M}, v{VX+4}")
        A(f"v_sub_f32 v{T+2}, v{M}, v{T}")
        A(f"v_sub_f32 v{T+4}, v{VX+4}, v{T}")
        A(f"v_mul_f32 v{T+2}, s40, v{T+2}")
        A(f"v_mul_f32 v{T+4}, s40, v{T+4}")
        A(f"v_exp_f32 v{T+2}, v{T+2}")
        A(f"v_exp_f32 v{T+4}, v{T+4}")
        A(f"v_mov_b32 v{M}, v{T}")
        A(f"v_mul_f32 v{LT}, v{LT}, v{T+2}")
        A(f"v_fmac_f32 v{LT}, v{VX+5}, v{T+4}")
        keep = [O+16*j+8*th+4*hh+c for j in range(4) for hh in range(2) for c in range(4)]
        for idx in range(0, 32, 2):
            r = keep[idx]
            A(f"v_pk_mul_f32 v[{r}:{r+1}], v[{r}:{r+1}], v[{T+2}:{T+3}] op_sel_hi:[1,0]")
            A(f"v_pk_fma_f32 v[{r}:{r+1}], v[{KF+idx}:{KF+idx+1}], v[{T+4}:{T+5}], v[{r}:{r+1}] op_sel_hi:[1,0,1]")
        A("s_cmp_ge_u32 s58, 3")
        A(f"s_cbranch_scc1 L_{role}_comb")
        A(f"s_mul_i32 s56, s37, {8*WSLOT}")
        A(f"v_lshlrev_b32 v{T}, 4, v{VLANE}")
        A(f"v_add_u32 v{T}, s56, v{T}")
        A(f"v_lshlrev_b32 v{T+2}, 3, v{VLANE}")
        A(f"v_add_u32 v{T+2}, s56, v{T+2}")
        A(f"v_add_u32 v{T+2}, 4096, v{T+2}")
        A(f"buffer_store_dwordx2 v[{M}:{M+1}], v{T+2}, s[28:31], 0 offen sc1")
        for k in range(4):
            for c in range(4):
                r = keep[8*k+2*c]
                A(f"v_cvt_pk_bf16_f32 v{KF+4*k+c}, v{r}, v{r+1}")
            A(f"buffer_store_dwordx4 v[{KF+4*k}:{KF+4*k+3}], v{T}, s[28:31], 0 offen offset:{k*1024} sc1")
        A("s_waitcnt vmcnt(0)")
        A("s_barrier")
        if role=="K":
            A("s_cmp_lg_u32 s3, 0")
            A("s_cbranch_scc1 L_e2")
            A("s_mov_b32 s58, 1")
            A("s_atomic_add s58, s[62:63], 0 glc")
            A("s_waitcnt lgkmcnt(0)")
            A(f"v_mov_b32 v{VX+1}, s58")
            A(f"ds_write_b32 v{VMBA}, v{VX+1} offset:4")
            A("s_waitcnt lgkmcnt(0)")
            A("L_e2:")
        A("s_barrier")
        A(f"ds_read_b32 v{VX+1}, v{VMBA} offset:4")
        A("s_waitcnt lgkmcnt(0)")
        A(f"v_readfirstlane_b32 s58, v{VX+1}")
        stamp(6)
        A("s_and_b32 s58, s58, 0xff")
        A("s_cmp_ge_u32 s58, 3")
        A(f"s_cbranch_scc1 L_{role}_late")
        stamp_out(1)
        A("s_endpgm")
        A(f"L_{role}_late:")
        pload()
        A(f"L_{role}_comb:")
        srd(32, 18, 43, 32768)
        A("s_lshl_b32 s56, s38, 13")
        A(f"v_lshlrev_b32 v{VTID}, 8, v{VL32}")
        A(f"v_lshl_add_u32 v{VTID}, v{VH}, 5, v{VTID}")
        A(f"v_add_u32 v{VTID}, s56, v{VTID}")
        A("s_waitcnt vmcnt(12)")
        A(f"v_max3_f32 v{T}, v{M}, v{P}, v{P+2}")
        A(f"v_max_f32 v{T}, v{T}, v{P+4}")
        ms = [M, P, P+2, P+4]
        F = [VX, VX+2, VX+4, VX+6]
        for i, m in enumerate(ms):
            A(f"v_sub_f32 v{F[i]}, v{m}, v{T}")
        for i in range(4):
            A(f"v_mul_f32 v{F[i]}, s40, v{F[i]}")
        for i in range(4):
            A(f"v_exp_f32 v{F[i]}, v{F[i]}")
        A("s_nop 0")
        A(f"v_mul_f32 v{LT}, v{LT}, v{F[0]}")
        for i in range(3):
            A(f"v_fmac_f32 v{LT}, v{P+2*i+1}, v{F[1+i]}")
        A(f"v_rcp_f32 v{T}, v{LT}")
        A("s_nop 0")
        A(f"v_mul_f32 v{T}, 0x58000000, v{T}")
        for i in range(4):
            A(f"v_mul_f32 v{F[i]}, v{F[i]}, v{T}")
        for idx in range(0, 32, 2):
            r = keep[idx]
            A(f"v_pk_mul_f32 v[{r}:{r+1}], v[{r}:{r+1}], v[{F[0]}:{F[0]+1}] op_sel_hi:[1,0]")
        for t in range(3):
            A(f"s_waitcnt vmcnt({8-4*t})")
            for i in range(16):
                src = RA+16*t+i; tmp = KF+2*i
                A(f"v_lshlrev_b32 v{tmp}, 16, v{src}")
                A(f"v_and_b32 v{tmp+1}, 0xffff0000, v{src}")
            for i in range(16):
                r = keep[2*i]; tmp = KF+2*i
                A(f"v_pk_fma_f32 v[{r}:{r+1}], v[{tmp}:{tmp+1}], v[{F[1+t]}:{F[1+t]+1}], v[{r}:{r+1}] op_sel_hi:[1,0,1]")
        for a in range(2):
            for c in range(4):
                r = 8*th+4*a+c
                A(f"v_cvt_pk_bf16_f32 v{S+8*a+2*c}, v{O+r}, v{O+16+r}")
                A(f"v_cvt_pk_bf16_f32 v{S+8*a+2*c+1}, v{O+32+r}, v{O+48+r}")
            A(f"buffer_store_dwordx4 v[{S+8*a}:{S+8*a+3}], v{VTID}, s[32:35], 0 offen offset:{128*th+64*a}")
            A(f"buffer_store_dwordx4 v[{S+8*a+4}:{S+8*a+7}], v{VTID}, s[32:35], 0 offen offset:{128*th+64*a+16}")
        if stamps:
            A("s_waitcnt vmcnt(0)")
            stamp(7)
            stamp_out(0)
        A("s_endpgm")
    A("L_end:"); A("s_endpgm")
    A('.section .rodata,"a"'); A(".p2align 6"); A(f".amdhsa_kernel {KNAME}")
    A("  .amdhsa_next_free_vgpr 256"); A("  .amdhsa_next_free_sgpr 100"); A("  .amdhsa_accum_offset 256")
    A("  .amdhsa_float_denorm_mode_32 3")
    A("  .amdhsa_group_segment_fixed_size 0"); A("  .amdhsa_kernarg_size 80"); A("  .amdhsa_user_sgpr_count 2")
    A("  .amdhsa_user_sgpr_kernarg_segment_ptr 1"); A("  .amdhsa_system_sgpr_workgroup_id_x 1"); A(".end_amdhsa_kernel")
    open(name, "w").write("\n".join(L) + "\n")

if __name__ == "__main__":
    kw = {}
    for a in sys.argv[2:]:
        if a == "--stamps": kw["stamps"] = 1
        elif a.startswith("--"):
            k, v = a[2:].split("=")
            kw[k] = tuple(int(x) for x in v.split(",")) if "," in v else int(v)
    gen(sys.argv[1], **kw)
```

```python
import sys, struct, math
KNAME = "standalone__kv_cache_quant_int4_int2_kv_with_per_channel_or_per_token_scales__sampling_kernel"
HDR = open("standalone__kv_cache_quant_int4_int2_kv_with_per_channel_or_per_token_scales__sampling.s.ref").read().split("; Override")[0]

def f32bits(x): return struct.unpack("<I", struct.pack("<f", x))[0]

O=0; Q=64; S=96; KF=112; P=144; RA=152; RB=184
M=216; LT=217; LS2=218; NMC=220; MTH=221; ALPHA=222
T=224
VKRD=232; VVRD=233; VWR=234; VCST=235; VOFFA=236; VOFFB=237; VLANE=238; VTID=239; VL32=240; VH=241
VX=242
VMBA=250; VPRE=251; VZ=252
STAGE=33792; KBYTES=17408
SLOT=8704
WSLOT=4608
C_SCALE = (128 ** -0.5) * math.log2(math.e) * 2.0**49
TH = 8.0 / C_SCALE

def gen(name, nt="nt", stamps=0, D=3, EARLY=1):
    NROW = 32
    QL=STAGE; KC=2*STAGE+1024; VC=KC+NROW*1024; MBX=KC+max(NROW*1536+1024, 8*SLOT); LDS_TOTAL=MBX+64
    L=[]; A=L.append
    uid=[0]
    def C(t): A("; " + t)
    def stamp(i):
        if stamps: A(f"s_memrealtime s[{64+2*i}:{65+2*i}]")
    def stamp_out(val):
        if not stamps: return
        A("s_waitcnt lgkmcnt(0)")
        A("s_lshl_b32 s56, s2, 3"); A("s_add_u32 s56, s56, s3"); A("s_lshl_b32 s56, s56, 6"); A("s_add_u32 s56, s56, 0x4000000")
        A("s_add_u32 s28, s22, s56"); A("s_addc_u32 s29, s23, 0"); A("s_mov_b32 s30, 64"); A("s_mov_b32 s31, 0x20000")
        A("s_mov_b64 exec, 1")
        for i in range(8):
            A(f"v_mov_b32 v{i}, s{64+2*i}")
        A("v_mov_b32 v8, 0"); A(f"v_mov_b32 v9, {val}")
        A("buffer_store_dwordx4 v[0:3], v8, s[28:31], 0 offen")
        A("buffer_store_dwordx4 v[4:7], v8, s[28:31], 0 offen offset:16")
        A("buffer_store_dword v9, v8, s[28:31], 0 offen offset:32")
    A(HDR.rstrip())
    C("Split-KV flash-decoding: 256 workgroups = 64 (b,hkv) x 4 token chunks of 2048; 8 waves each.")
    C("Waves 0-3 dequantise K, waves 4-7 dequantise V into LDS (bf16); every wave runs QK^T / softmax / PV")
    C("for 32 query rows x 32 tokens of each 64-token tile. Partials are merged by the workgroup that finishes last.")
    A(f"; @launch grid=(256,1,1) block=(512,1,1) lds={LDS_TOTAL}")
    A('.amdgcn_target "amdgcn-amd-amdhsa--gfx950"')
    A(".text"); A(f".globl {KNAME}"); A(".p2align 8"); A(f".type {KNAME},@function"); A(f"{KNAME}:")
    A("s_cmp_ge_u32 s2, 256"); A("s_cbranch_scc1 L_end")
    for i in range(8): stamp(i)
    A("s_load_dwordx16 s[4:19], s[0:1], 0")
    A("s_load_dwordx4 s[20:23], s[0:1], 64")
    A(f"v_lshrrev_b32 v{T}, 6, v0")
    A(f"v_and_b32 v{VLANE}, 63, v0")
    A(f"v_mov_b32 v{VTID}, v0")
    A(f"v_readfirstlane_b32 s3, v{T}")
    A(f"v_and_b32 v{VL32}, 31, v0")
    A(f"v_bfe_u32 v{VH}, v0, 5, 1")
    A("s_lshr_b32 s36, s2, 2")
    A("s_and_b32 s37, s2, 3")
    A("s_and_b32 s38, s3, 3")
    A("s_lshr_b32 s39, s3, 2")
    A("s_lshl_b32 s58, s2, 20")
    A("s_lshl_b32 s60, s38, 13")
    A("s_movk_i32 s80, 272")
    A("s_cmp_eq_u32 s39, 0")
    A("s_cbranch_scc0 L_v0")
    A(f"v_lshlrev_b32 v{VOFFA}, 4, v{VLANE}")
    A("s_branch L_v1")
    A("L_v0:")
    A(f"v_lshlrev_b32 v{VOFFA}, 4, v{VL32}")
    A(f"v_lshl_add_u32 v{VOFFA}, v{VH}, 11, v{VOFFA}")
    A("L_v1:")
    A(f"v_add_u32 v{VOFFA}, s60, v{VOFFA}")
    A(f"v_add_u32 v{VOFFB}, 4096, v{VOFFA}")
    A("s_waitcnt lgkmcnt(0)")
    A("s_cmp_eq_u32 s39, 0")
    A("s_cselect_b32 s24, s6, s8"); A("s_cselect_b32 s25, s7, s9")
    A("s_add_u32 s24, s24, s58"); A("s_addc_u32 s25, s25, 0")
    A("s_mov_b32 s26, 0x100000"); A("s_mov_b32 s27, 0x20000")
    def srd(d, p, off, size):
        A(f"s_add_u32 s{d}, s{p}, s{off}"); A(f"s_addc_u32 s{d+1}, s{p+1}, 0")
        A(f"s_mov_b32 s{d+2}, {size}"); A(f"s_mov_b32 s{d+3}, 0x20000")
    def rawload(role, Rr, n, wait=True):
        step = 1024 if role=="K" else 512
        vo = VOFFA if n<4 else VOFFB
        if wait: A(f"s_waitcnt vmcnt({D-1})")
        A(f"buffer_load_dwordx4 v[{Rr+4*n}:{Rr+4*n+3}], v{vo}, s[24:27], 0 offen offset:{(n%4)*step} {nt}")
        if n==3: A(f"v_add_u32 v{VOFFA}, 0x8000, v{VOFFA}")
        if n==7: A(f"v_add_u32 v{VOFFB}, 0x8000, v{VOFFB}")

    def kconst(b):
        for i in range(4):
            A(f"v_lshlrev_b32 v{T}, 16, v{b+i}")
            A(f"v_and_b32 v{T+1}, 0xffff0000, v{b+i}")
            A(f"v_lshlrev_b32 v{T+2}, 16, v{b+4+i}")
            A(f"v_and_b32 v{T+3}, 0xffff0000, v{b+4+i}")
            A(f"v_mul_f32 v{S+2*i}, 0x71800000, v{T}")
            A(f"v_mul_f32 v{S+2*i+1}, 0x71800000, v{T+1}")
            A(f"v_mul_f32 v{T+2}, v{T+2}, v{T}")
            A(f"v_mul_f32 v{T+3}, v{T+3}, v{T+1}")
            A(f"v_mul_f32 v{S+8+2*i}, 0xa7000000, v{T+2}")
            A(f"v_mul_f32 v{S+8+2*i+1}, 0xa7000000, v{T+3}")
        A(f"ds_write_b128 v{VX}, v[{S}:{S+3}]")
        A(f"ds_write_b128 v{VX}, v[{S+4}:{S+7}] offset:16")
        A(f"ds_write_b128 v{VX}, v[{S+8}:{S+11}] offset:512")
        A(f"ds_write_b128 v{VX}, v[{S+12}:{S+15}] offset:528")
    def vconst(b):
        for i in range(2):
            A(f"v_lshlrev_b32 v{T+4}, 16, v{b+8+i}")
            A(f"v_and_b32 v{T+1}, 0xffff0000, v{b+8+i}")
            A(f"v_lshlrev_b32 v{T+2}, 16, v{b+10+i}")
            A(f"v_and_b32 v{T+3}, 0xffff0000, v{b+10+i}")
            A(f"v_mul_f32 v{P+2*i}, 0x71800000, v{T+4}")
            A(f"v_mul_f32 v{P+2*i+1}, 0x71800000, v{T+1}")
            A(f"v_mul_f32 v{T+2}, v{T+2}, v{T+4}")
            A(f"v_mul_f32 v{T+3}, v{T+3}, v{T+1}")
            A(f"v_mul_f32 v{P+4+2*i}, 0xa7000000, v{T+2}")
            A(f"v_mul_f32 v{P+4+2*i+1}, 0xa7000000, v{T+3}")
        A(f"ds_write_b128 v{VX+1}, v[{P}:{P+3}]")
        A(f"ds_write_b128 v{VX+1}, v[{P+4}:{P+7}] offset:16")

    def cst_reads(role):
        if role=="K":
            A(f"ds_read_b128 v[{S}:{S+3}], v{VCST}")
            A(f"ds_read_b128 v[{S+4}:{S+7}], v{VCST} offset:512")
            A(f"v_add_u32 v{VCST}, 1024, v{VCST}")
            return 2
        else:
            A(f"ds_read_b128 v[{S}:{S+3}], v{VCST}")
            A(f"ds_read_b128 v[{S+4}:{S+7}], v{VCST} offset:16")
            A(f"ds_read_b128 v[{S+8}:{S+11}], v{VCST} offset:64")
            A(f"ds_read_b128 v[{S+12}:{S+15}], v{VCST} offset:80")
            A(f"v_add_u32 v{VCST}, 512, v{VCST}")
            return 4

    def produce(role, Rr, b, pts, vw):
        kb = b*STAGE; vb = kb + KBYTES
        A(f"s_waitcnt vmcnt({vw}) lgkmcnt(0)")
        for p in range(4):
            for (Rl, n) in pts.get(p, []): rawload(role, Rl, n)
            if role=="K":
                for n in (2*p, 2*p+1):
                    r = Rr+4*n
                    A(f"v_pk_fma_f32 v[{r}:{r+1}], v[{r}:{r+1}], v[{S}:{S+1}], v[{S+4}:{S+5}]")
                    A(f"v_pk_fma_f32 v[{r+2}:{r+3}], v[{r+2}:{r+3}], v[{S+2}:{S+3}], v[{S+6}:{S+7}]")
                    A(f"v_cvt_pk_bf16_f32 v{KF+2*n}, v{r}, v{r+1}")
                    A(f"v_cvt_pk_bf16_f32 v{KF+2*n+1}, v{r+2}, v{r+3}")
                    A(f"ds_write_b64 v{VWR}, v[{KF+2*n}:{KF+2*n+1}] offset:{kb+n*544}")
            else:
                for i in (2*p, 2*p+1):
                    r = Rr+4*i
                    cs = S + (i//4)*8 + i%4; cc = cs+4
                    x = cs & 1; c0 = cs & ~1; c1 = cc & ~1
                    for jj in (0, 2):
                        A(f"v_pk_fma_f32 v[{r+jj}:{r+jj+1}], v[{r+jj}:{r+jj+1}], v[{c0}:{c0+1}], v[{c1}:{c1+1}] op_sel:[0,{x},{x}] op_sel_hi:[1,{x},{x}]")
                for j in range(4):
                    A(f"v_cvt_pk_bf16_f32 v{KF+4*j+p}, v{Rr+8*p+j}, v{Rr+8*p+4+j}")
        if role=="V":
            for j in range(4):
                A(f"ds_write_b128 v{VWR}, v[{KF+4*j}:{KF+4*j+3}] offset:{vb+j*1024}")
        for (Rl, n) in pts.get(4, []): rawload(role, Rl, n)

    def consume(role, b, pts, last=False):
        kb = b*STAGE; vb = kb + KBYTES
        def pt(k):
            for (Rl, n) in pts.get(k, []): rawload(role, Rl, n)
        for s in range(8):
            A(f"ds_read_b128 v[{KF+4*s}:{KF+4*s+3}], v{VKRD} offset:{kb+s*32}")
        pt(0)
        for s in range(8):
            A(f"s_waitcnt lgkmcnt({7-s})")
            c = "0" if s==0 else f"v[{S}:{S+15}]"
            A(f"v_mfma_f32_32x32x16_bf16 v[{S}:{S+15}], v[{KF+4*s}:{KF+4*s+3}], v[{Q+4*s}:{Q+4*s+3}], {c}")
        for x in range(8):
            A(f"ds_read_b128 v[{KF+4*x}:{KF+4*x+3}], v{VVRD} offset:{vb+x*1024}")
        pt(1)
        A("s_nop 3" if not pts.get(1) else "s_nop 1")
        A(f"v_max3_f32 v{T}, v{S}, v{S+1}, v{S+2}")
        A(f"v_max3_f32 v{T+1}, v{S+3}, v{S+4}, v{S+5}")
        A(f"v_max3_f32 v{T+2}, v{S+6}, v{S+7}, v{S+8}")
        A(f"v_max3_f32 v{T+3}, v{S+9}, v{S+10}, v{S+11}")
        A(f"v_max3_f32 v{T}, v{T}, v{S+12}, v{S+13}")
        A(f"v_max3_f32 v{T+1}, v{T+1}, v{S+14}, v{S+15}")
        A(f"v_max3_f32 v{T}, v{T}, v{T+2}, v{T+3}")
        uid[0]+=1; u=uid[0]
        A(f"v_max_f32 v{T}, v{T}, v{T+1}")
        A(f"v_cmp_gt_f32 vcc, v{T}, v{MTH}")
        A("s_nop 1")
        A(f"s_cbranch_vccz L_nr{u}")
        C("some row's running max grew by more than 2^8: move the reference max to the true running max and rescale")
        A(f"v_max_f32 v{T}, v{T}, v{M}")
        A(f"v_mov_b32 v{T+1}, v{T}")
        A("s_nop 1")
        A(f"v_permlane32_swap_b32 v{T}, v{T+1}")
        A("s_nop 0")
        A(f"v_max_f32 v{T}, v{T}, v{T+1}")
        A(f"v_sub_f32 v{T+2}, v{M}, v{T}")
        A(f"v_mul_f32 v{T+2}, s40, v{T+2}")
        A(f"v_mul_f32 v{NMC}, s44, v{T}")
        A(f"v_exp_f32 v{ALPHA}, v{T+2}")
        A(f"v_mov_b32 v{M}, v{T}")
        A(f"v_add_f32 v{MTH}, s45, v{T}")
        A(f"v_pk_mul_f32 v[{LS2}:{LS2+1}], v[{LS2}:{LS2+1}], v[{ALPHA}:{ALPHA+1}] op_sel_hi:[1,0]")
        for i in range(0, 64, 2):
            A(f"v_pk_mul_f32 v[{O+i}:{O+i+1}], v[{O+i}:{O+i+1}], v[{ALPHA}:{ALPHA+1}] op_sel_hi:[1,0]")
        A(f"L_nr{u}:")
        for r in range(0, 16, 2):
            A(f"v_pk_fma_f32 v[{S+r}:{S+r+1}], v[{S+r}:{S+r+1}], s[40:41], v[{NMC}:{NMC+1}] op_sel_hi:[1,1,0]")
        for r in range(16):
            A(f"v_exp_f32 v{S+r}, v{S+r}")
        pt(2)
        for k in range(8):
            A(f"v_cvt_pk_bf16_f32 v{P+k}, v{S+2*k}, v{S+2*k+1}")
        for i in range(4):
            A(f"v_pk_add_f32 v[{T+2*i}:{T+2*i+1}], v[{S+4*i}:{S+4*i+1}], v[{S+4*i+2}:{S+4*i+3}]")
        A(f"v_pk_add_f32 v[{T}:{T+1}], v[{T}:{T+1}], v[{T+2}:{T+3}]")
        A(f"v_pk_add_f32 v[{T+4}:{T+5}], v[{T+4}:{T+5}], v[{T+6}:{T+7}]")
        nc = 0 if last else cst_reads(role)
        pt(3)
        A(f"s_waitcnt lgkmcnt({nc})")
        for s in range(2):
            for j in range(4):
                x = s*4+j
                A(f"v_mfma_f32_32x32x16_bf16 v[{O+16*j}:{O+16*j+15}], v[{KF+4*x}:{KF+4*x+3}], v[{P+4*s}:{P+4*s+3}], v[{O+16*j}:{O+16*j+15}]")
            if s==0:
                A(f"v_pk_add_f32 v[{T}:{T+1}], v[{T}:{T+1}], v[{T+4}:{T+5}]")
                A(f"v_pk_add_f32 v[{LS2}:{LS2+1}], v[{LS2}:{LS2+1}], v[{T}:{T+1}]")
        pt(4)

    def bar():
        A("s_waitcnt lgkmcnt(0)"); A("s_barrier")

    A("s_cmp_eq_u32 s39, 0")
    A("s_cbranch_scc0 L_V_entry")
    for role in ("K","V"):
        th = 0 if role=="K" else 1
        shifted = (role=="V")
        A(f"L_{role}_entry:")
        for n in range(8): rawload(role, RA, n, False)
        A("s_lshl_b32 s43, s36, 15")
        A("s_lshl_b32 s56, s2, 13")
        A("s_lshl_b32 s57, s2, 12")
        srd(28, 10, 56, 8192)
        srd(32, 12, 56, 8192)
        srd(84, 14, 57, 4096)
        srd(48, 16, 57, 4096)
        srd(52, 4, 43, 32768)
        A(f"v_lshlrev_b32 v{T+4}, 4, v{VTID}")
        A(f"v_lshlrev_b32 v{T+5}, 3, v{VTID}")
        b = KF
        A(f"buffer_load_dwordx4 v[{b}:{b+3}], v{T+4}, s[28:31], 0 offen {nt}")
        A(f"buffer_load_dwordx4 v[{b+4}:{b+7}], v{T+4}, s[32:35], 0 offen {nt}")
        A(f"buffer_load_dwordx2 v[{b+8}:{b+9}], v{T+5}, s[84:87], 0 offen {nt}")
        A(f"buffer_load_dwordx2 v[{b+10}:{b+11}], v{T+5}, s[48:51], 0 offen {nt}")
        A(f"v_lshlrev_b32 v{T+2}, 4, v{VLANE}")
        A("s_lshl_b32 s60, s3, 12")
        A(f"v_add_u32 v{T+2}, s60, v{T+2}")
        for n in range(4):
            A(f"buffer_load_dwordx4 v[{Q+4*n}:{Q+4*n+3}], v{T+2}, s[52:55], 0 offen offset:{n*1024} {nt}")
        NB0 = 4
        for n in range(NB0): rawload(role, RB, n, False)
        stamp(4)
        A(f"s_mov_b32 s40, {f32bits(C_SCALE):#x}")
        A(f"s_mov_b32 s41, {f32bits(C_SCALE):#x}")
        A(f"s_mov_b32 s44, {f32bits(-C_SCALE):#x}")
        A(f"s_mov_b32 s45, {f32bits(TH):#x}")
        A("s_lshl_b32 s56, s36, 2")
        A("s_add_u32 s62, s20, s56"); A("s_addc_u32 s63, s21, 0")
        A("s_mov_b32 s42, 15")
        A("s_lshl_b32 s60, s39, 5")
        A(f"v_add_u32 v{T+3}, s60, v{VL32}")
        A(f"v_mul_lo_u32 v{VKRD}, v{T+3}, s80")
        A(f"v_lshl_add_u32 v{VKRD}, v{VH}, 4, v{VKRD}")
        A("s_lshl_b32 s60, s39, 13")
        A(f"v_lshlrev_b32 v{VVRD}, 4, v{VLANE}")
        A(f"v_add_u32 v{VVRD}, s60, v{VVRD}")
        if role=="K":
            A("s_lshl_b32 s60, s38, 4")
            A(f"v_add_u32 v{T+3}, s60, v{VH}")
            A(f"v_mul_lo_u32 v{VWR}, v{T+3}, s80")
            A(f"v_lshl_add_u32 v{VWR}, v{VL32}, 3, v{VWR}")
            A(f"v_lshlrev_b32 v{VCST}, 4, v{VL32}")
            A(f"v_add_u32 v{VCST}, {KC}, v{VCST}")
        else:
            A("s_lshl_b32 s60, s38, 12")
            A(f"v_lshlrev_b32 v{VWR}, 4, v{VLANE}")
            A(f"v_add_u32 v{VWR}, s60, v{VWR}")
            A("s_lshl_b32 s60, s38, 7")
            A(f"s_add_u32 s60, s60, {VC}")
            A(f"v_lshlrev_b32 v{VCST}, 5, v{VH}")
            A(f"v_add_u32 v{VCST}, s60, v{VCST}")
        for i in range(64): A(f"v_mov_b32 v{O+i}, 0")
        A(f"v_mov_b32 v{M}, {f32bits(-3.0e38):#x}")
        A(f"v_mov_b32 v{MTH}, {f32bits(-3.0e38):#x}")
        A(f"v_mov_b32 v{NMC}, 0")
        A(f"v_mov_b32 v{LS2}, 0"); A(f"v_mov_b32 v{LS2+1}, 0")
        A(f"v_mov_b32 v{VMBA}, {MBX}")
        A(f"v_mov_b32 v{VZ}, 0")
        A(f"v_lshrrev_b32 v{T}, 4, v{VTID}")
        A(f"v_and_b32 v{T+1}, 15, v{VTID}")
        A(f"v_lshlrev_b32 v{VX}, 10, v{T}")
        A(f"v_lshl_add_u32 v{VX}, v{T+1}, 5, v{VX}")
        A(f"v_add_u32 v{VX}, {KC}, v{VX}")
        A(f"v_lshlrev_b32 v{VX+1}, 5, v{VTID}")
        A(f"v_add_u32 v{VX+1}, {VC}, v{VX+1}")
        A(f"v_lshrrev_b32 v{T}, 4, v{VLANE}")
        A("s_lshl_b32 s60, s3, 4")
        A(f"v_add_u32 v{T}, s60, v{T}")
        A(f"v_mul_lo_u32 v{VX+2}, v{T}, s80")
        A(f"v_lshl_add_u32 v{VX+2}, v{T+1}, 4, v{VX+2}")
        A(f"v_add_u32 v{VX+2}, {QL}, v{VX+2}")
        A("s_lshl_b32 s60, s38, 5")
        A(f"v_add_u32 v{T}, s60, v{VL32}")
        A(f"v_mul_lo_u32 v{VX+3}, v{T}, s80")
        A(f"v_lshl_add_u32 v{VX+3}, v{VH}, 4, v{VX+3}")
        A(f"v_add_u32 v{VX+3}, {QL}, v{VX+3}")
        A(f"s_waitcnt vmcnt({NB0})")
        stamp(5)
        kconst(KF); rawload(role, RB, 4); vconst(KF)
        for n in range(4):
            A(f"ds_write_b128 v{VX+2}, v[{Q+4*n}:{Q+4*n+3}] offset:{n*4*272}")
        rawload(role, RB, 5)
        bar()
        stamp(1)
        for s in range(8):
            A(f"ds_read_b128 v[{Q+4*s}:{Q+4*s+3}], v{VX+3} offset:{s*32}")
        cst_reads(role)
        produce(role, RA, 0, {1:[(RB,6)], 3:[(RB,7)]}, 6)
        if shifted:
            cst_reads(role)
            for n in range(4): rawload(role, RA, n)
        bar()
        stamp(2)
        def iteration(par, loads=True):
            Rc = (RA, RB)[par]; Rn = (RB, RA)[par]
            if not shifted:
                consume(role, par, {0:[(Rc,0)], 1:[(Rc,1)], 2:[(Rc,2)], 3:[(Rc,3)], 4:[(Rc,4)]} if loads else {})
                produce(role, Rn, 1-par, {1:[(Rc,5)], 3:[(Rc,6)], 4:[(Rc,7)]} if loads else {}, 5 if loads else 0)
            else:
                produce(role, Rn, 1-par, {0:[(Rc,4)], 2:[(Rc,5)], 4:[(Rc,6)]} if loads else {}, 4)
                consume(role, par, {0:[(Rc,7)], 1:[(Rn,0)], 2:[(Rn,1)], 3:[(Rn,2)], 4:[(Rn,3)]} if loads else {}, last=not loads)
            bar()
        A(f"L_{role}_loop:")
        iteration(0); iteration(1)
        A("s_sub_u32 s42, s42, 1")
        A("s_cmp_lg_u32 s42, 0")
        A(f"s_cbranch_scc1 L_{role}_loop")
        C("tiles 30 and 31: nothing left to load")
        iteration(0, loads=False)
        if role=="K" and EARLY:
            A("s_cmp_lg_u32 s3, 0")
            A("s_cbranch_scc1 L_e0")
            A(f"global_load_dword v{VPRE}, v{VZ}, s[62:63] sc1")
            A("L_e0:")
        consume(role, 1, {}, last=True)
        stamp(3)
        if role=="K" and not EARLY:
            A("s_cmp_lg_u32 s3, 0")
            A("s_cbranch_scc1 L_e0")
            A(f"global_load_dword v{VPRE}, v{VZ}, s[62:63] sc1")
            A("L_e0:")
        A(f"v_add_f32 v{LT}, v{LS2}, v{LS2+1}")
        A(f"v_mov_b32 v{T}, v{LT}")
        A("s_nop 1")
        A(f"v_permlane32_swap_b32 v{LT}, v{T}")
        A("s_nop 0")
        A(f"v_add_f32 v{LT}, v{LT}, v{T}")
        A(f"s_mul_i32 s56, s3, {SLOT}"); A(f"s_add_u32 s56, s56, {KC}")
        A("s_xor_b32 s58, s3, 4")
        A(f"s_mul_i32 s57, s58, {SLOT}"); A(f"s_add_u32 s57, s57, {KC}")
        A(f"v_lshlrev_b32 v{T+1}, 4, v{VLANE}")
        A(f"v_add_u32 v{T+2}, s56, v{T+1}")
        A(f"v_add_u32 v{T+3}, s57, v{T+1}")
        A(f"v_lshlrev_b32 v{T+1}, 3, v{VLANE}")
        A(f"v_add_u32 v{T+4}, s56, v{T+1}")
        A(f"v_add_u32 v{T+5}, s57, v{T+1}")
        A("s_lshl_b32 s56, s36, 5"); A("s_add_u32 s56, s56, s3")
        A(f"s_mul_i32 s56, s56, {WSLOT}")
        srd(28, 22, 56, WSLOT*25)
        k=0
        for j in range(4):
            for hh in range(2):
                r = O+16*j+8*(1-th)+4*hh
                A(f"ds_write_b128 v{T+2}, v[{r}:{r+3}] offset:{k*1024}")
                k+=1
        A(f"ds_write_b64 v{T+4}, v[{M}:{M+1}] offset:8192")
        A("s_waitcnt vmcnt(0)")
        if role=="K":
            A("s_cmp_lg_u32 s3, 0")
            A("s_cbranch_scc1 L_e1")
            A(f"ds_write_b32 v{VMBA}, v{VPRE}")
            A("L_e1:")
        A("s_waitcnt lgkmcnt(0)"); A("s_barrier")
        A(f"ds_read_b32 v{VX+1}, v{VMBA}")
        for k in range(8):
            A(f"ds_read_b128 v[{KF+4*k}:{KF+4*k+3}], v{T+3} offset:{k*1024}")
        A(f"ds_read_b64 v[{VX+4}:{VX+5}], v{T+5} offset:8192")
        A("s_waitcnt lgkmcnt(9)")
        A(f"v_readfirstlane_b32 s58, v{VX+1}")
        def pload():
            A(f"v_lshlrev_b32 v{T}, 4, v{VLANE}")
            A(f"v_lshlrev_b32 v{T+1}, 3, v{VLANE}")
            A(f"v_add_u32 v{T+1}, 4096, v{T+1}")
            for t in range(3):
                A(f"s_add_u32 s56, s37, {t+1}"); A("s_and_b32 s56, s56, 3"); A(f"s_mul_i32 s{88+t}, s56, {8*WSLOT}")
                A(f"v_add_u32 v{VX+2}, s{88+t}, v{T+1}")
                A(f"buffer_load_dwordx2 v[{P+2*t}:{P+2*t+1}], v{VX+2}, s[28:31], 0 offen sc1")
            for t in range(3):
                A(f"v_add_u32 v{VX}, s{88+t}, v{T}")
                for k in range(4):
                    r = RA+16*t+4*k
                    A(f"buffer_load_dwordx4 v[{r}:{r+3}], v{VX}, s[28:31], 0 offen offset:{k*1024} sc1")
        A("s_cmp_lt_u32 s58, 3")
        A(f"s_cbranch_scc1 L_{role}_nold")
        stamp(6)
        pload()
        A(f"L_{role}_nold:")
        A("s_waitcnt lgkmcnt(0)")
        A(f"v_max_f32 v{T}, v{M}, v{VX+4}")
        A(f"v_sub_f32 v{T+2}, v{M}, v{T}")
        A(f"v_sub_f32 v{T+4}, v{VX+4}, v{T}")
        A(f"v_mul_f32 v{T+2}, s40, v{T+2}")
        A(f"v_mul_f32 v{T+4}, s40, v{T+4}")
        A(f"v_exp_f32 v{T+2}, v{T+2}")
        A(f"v_exp_f32 v{T+4}, v{T+4}")
        A(f"v_mov_b32 v{M}, v{T}")
        A(f"v_mul_f32 v{LT}, v{LT}, v{T+2}")
        A(f"v_fmac_f32 v{LT}, v{VX+5}, v{T+4}")
        keep = [O+16*j+8*th+4*hh+c for j in range(4) for hh in range(2) for c in range(4)]
        for idx in range(0, 32, 2):
            r = keep[idx]
            A(f"v_pk_mul_f32 v[{r}:{r+1}], v[{r}:{r+1}], v[{T+2}:{T+3}] op_sel_hi:[1,0]")
            A(f"v_pk_fma_f32 v[{r}:{r+1}], v[{KF+idx}:{KF+idx+1}], v[{T+4}:{T+5}], v[{r}:{r+1}] op_sel_hi:[1,0,1]")
        A("s_cmp_ge_u32 s58, 3")
        A(f"s_cbranch_scc1 L_{role}_comb")
        C("publish this workgroup's partial, then count it")
        A(f"s_mul_i32 s56, s37, {8*WSLOT}")
        A(f"v_lshlrev_b32 v{T}, 4, v{VLANE}")
        A(f"v_add_u32 v{T}, s56, v{T}")
        A(f"v_lshlrev_b32 v{T+2}, 3, v{VLANE}")
        A(f"v_add_u32 v{T+2}, s56, v{T+2}")
        A(f"v_add_u32 v{T+2}, 4096, v{T+2}")
        A(f"buffer_store_dwordx2 v[{M}:{M+1}], v{T+2}, s[28:31], 0 offen sc1")
        for k in range(4):
            for c in range(4):
                r = keep[8*k+2*c]
                A(f"v_cvt_pk_bf16_f32 v{KF+4*k+c}, v{r}, v{r+1}")
            A(f"buffer_store_dwordx4 v[{KF+4*k}:{KF+4*k+3}], v{T}, s[28:31], 0 offen offset:{k*1024} sc1")
        A("s_waitcnt vmcnt(0)")
        A("s_barrier")
        if role=="K":
            A("s_cmp_lg_u32 s3, 0")
            A("s_cbranch_scc1 L_e2")
            A("s_mov_b64 exec, 1")
            A(f"v_mov_b32 v{VX}, 1")
            A(f"global_atomic_add v{VX+1}, v{VZ}, v{VX}, s[62:63] sc0")
            A("s_waitcnt vmcnt(0)")
            A(f"ds_write_b32 v{VMBA}, v{VX+1} offset:4")
            A("s_waitcnt lgkmcnt(0)")
            A("s_mov_b64 exec, -1")
            A("L_e2:")
        A("s_barrier")
        A(f"ds_read_b32 v{VX+1}, v{VMBA} offset:4")
        A("s_waitcnt lgkmcnt(0)")
        A(f"v_readfirstlane_b32 s58, v{VX+1}")
        stamp(6)
        A("s_cmp_ge_u32 s58, 3")
        A(f"s_cbranch_scc1 L_{role}_late")
        stamp_out(1)
        A("s_endpgm")
        A(f"L_{role}_late:")
        pload()
        A(f"L_{role}_comb:")
        srd(32, 18, 43, 32768)
        A("s_lshl_b32 s56, s38, 13")
        A(f"v_lshlrev_b32 v{VTID}, 8, v{VL32}")
        A(f"v_lshl_add_u32 v{VTID}, v{VH}, 5, v{VTID}")
        A(f"v_add_u32 v{VTID}, s56, v{VTID}")
        A("s_waitcnt vmcnt(12)")
        A(f"v_max3_f32 v{T}, v{M}, v{P}, v{P+2}")
        A(f"v_max_f32 v{T}, v{T}, v{P+4}")
        ms = [M, P, P+2, P+4]
        F = [VX, VX+2, VX+4, VX+6]
        for i, m in enumerate(ms):
            A(f"v_sub_f32 v{F[i]}, v{m}, v{T}")
        for i in range(4):
            A(f"v_mul_f32 v{F[i]}, s40, v{F[i]}")
        for i in range(4):
            A(f"v_exp_f32 v{F[i]}, v{F[i]}")
        A("s_nop 0")
        A(f"v_mul_f32 v{LT}, v{LT}, v{F[0]}")
        for i in range(3):
            A(f"v_fmac_f32 v{LT}, v{P+2*i+1}, v{F[1+i]}")
        A(f"v_rcp_f32 v{T}, v{LT}")
        A("s_nop 0")
        A(f"v_mul_f32 v{T}, 0x58000000, v{T}")
        for i in range(4):
            A(f"v_mul_f32 v{F[i]}, v{F[i]}, v{T}")
        for idx in range(0, 32, 2):
            r = keep[idx]
            A(f"v_pk_mul_f32 v[{r}:{r+1}], v[{r}:{r+1}], v[{F[0]}:{F[0]+1}] op_sel_hi:[1,0]")
        for t in range(3):
            A(f"s_waitcnt vmcnt({8-4*t})")
            for i in range(16):
                src = RA+16*t+i; tmp = KF+2*i
                A(f"v_lshlrev_b32 v{tmp}, 16, v{src}")
                A(f"v_and_b32 v{tmp+1}, 0xffff0000, v{src}")
            for i in range(16):
                r = keep[2*i]; tmp = KF+2*i
                A(f"v_pk_fma_f32 v[{r}:{r+1}], v[{tmp}:{tmp+1}], v[{F[1+t]}:{F[1+t]+1}], v[{r}:{r+1}] op_sel_hi:[1,0,1]")
        for a in range(2):
            for c in range(4):
                r = 8*th+4*a+c
                A(f"v_cvt_pk_bf16_f32 v{S+8*a+2*c}, v{O+r}, v{O+16+r}")
                A(f"v_cvt_pk_bf16_f32 v{S+8*a+2*c+1}, v{O+32+r}, v{O+48+r}")
            A(f"buffer_store_dwordx4 v[{S+8*a}:{S+8*a+3}], v{VTID}, s[32:35], 0 offen offset:{128*th+64*a}")
            A(f"buffer_store_dwordx4 v[{S+8*a+4}:{S+8*a+7}], v{VTID}, s[32:35], 0 offen offset:{128*th+64*a+16}")
        if stamps:
            A("s_waitcnt vmcnt(0)")
            stamp(7)
            stamp_out(0)
        A("s_endpgm")
    A("L_end:"); A("s_endpgm")
    A('.section .rodata,"a"'); A(".p2align 6"); A(f".amdhsa_kernel {KNAME}")
    A("  .amdhsa_next_free_vgpr 256"); A("  .amdhsa_next_free_sgpr 96"); A("  .amdhsa_accum_offset 256")
    A("  .amdhsa_float_denorm_mode_32 3")
    A("  .amdhsa_group_segment_fixed_size 0"); A("  .amdhsa_kernarg_size 80"); A("  .amdhsa_user_sgpr_count 2")
    A("  .amdhsa_user_sgpr_kernarg_segment_ptr 1"); A("  .amdhsa_system_sgpr_workgroup_id_x 1"); A(".end_amdhsa_kernel")
    open(name, "w").write("\n".join(L) + "\n")

if __name__ == "__main__":
    kw = {}
    for a in sys.argv[2:]:
        if a == "--stamps": kw["stamps"] = 1
        elif a.startswith("--"):
            k, v = a[2:].split("=")
            kw[k] = tuple(int(x) for x in v.split(",")) if "," in v else int(v)
    gen(sys.argv[1], **kw)
```

```python
import sys, struct, math
KNAME = "standalone__kv_cache_quant_int4_int2_kv_with_per_channel_or_per_token_scales__sampling_kernel"
HDR = open("standalone__kv_cache_quant_int4_int2_kv_with_per_channel_or_per_token_scales__sampling.s.ref").read().split("; Override")[0]

def f32bits(x): return struct.unpack("<I", struct.pack("<f", x))[0]

O=0; Q=64; S=96; KF=112; P=144; RA=152; RB=184
M=216; LT=217; LS2=218; NMC=220; MTH=221; ALPHA=222
T=224
VKRD=232; VVRD=233; VWR=234; VCST=235; VOFFA=236; VOFFB=237; VLANE=238; VTID=239; VL32=240; VH=241
VX=242
VMBA=250; VPRE=251; VZ=252
STAGE=33792; KBYTES=17408
SLOT=8704
WSLOT=4608
C_SCALE = (128 ** -0.5) * math.log2(math.e)
TH = 8.0 / C_SCALE

def gen(name, nt="nt", stamps=0, D=3, EARLY=1, PRO=0, NA=8):
    NROW = 32
    QL=STAGE; KC=2*STAGE+1024; VC=KC+NROW*1024; MBX=KC+max(NROW*1536+1024, 8*SLOT); LDS_TOTAL=MBX+64
    L=[]; A=L.append
    uid=[0]
    def C(t): A("; " + t)
    def stamp(i):
        if stamps: A(f"s_memrealtime s[{64+2*i}:{65+2*i}]")
    def stamp_out(val):
        if not stamps: return
        A("s_waitcnt lgkmcnt(0)")
        A("s_lshl_b32 s56, s2, 3"); A("s_add_u32 s56, s56, s3"); A("s_lshl_b32 s56, s56, 6"); A("s_add_u32 s56, s56, 0x4000000")
        A("s_add_u32 s28, s22, s56"); A("s_addc_u32 s29, s23, 0"); A("s_mov_b32 s30, 64"); A("s_mov_b32 s31, 0x20000")
        A("s_mov_b64 exec, 1")
        for i in range(8):
            A(f"v_mov_b32 v{i}, s{64+2*i}")
        A("v_mov_b32 v8, 0"); A(f"v_mov_b32 v9, {val}")
        A("buffer_store_dwordx4 v[0:3], v8, s[28:31], 0 offen")
        A("buffer_store_dwordx4 v[4:7], v8, s[28:31], 0 offen offset:16")
        A("buffer_store_dword v9, v8, s[28:31], 0 offen offset:32")
    A(HDR.rstrip())
    C("Split-KV flash-decoding: 256 workgroups = 64 (b,hkv) x 4 token chunks of 2048; 8 waves each.")
    C("Waves 0-3 dequantise K, waves 4-7 dequantise V into LDS (bf16); every wave runs QK^T / softmax / PV")
    C("for 32 query rows x 32 tokens of each 64-token tile. Partials are merged by the workgroup that finishes last.")
    A(f"; @launch grid=(256,1,1) block=(512,1,1) lds={LDS_TOTAL}")
    A('.amdgcn_target "amdgcn-amd-amdhsa--gfx950"')
    A(".text"); A(f".globl {KNAME}"); A(".p2align 8"); A(f".type {KNAME},@function"); A(f"{KNAME}:")
    A("s_cmp_ge_u32 s2, 256"); A("s_cbranch_scc1 L_end")
    for i in range(8): stamp(i)
    A("s_load_dwordx16 s[4:19], s[0:1], 0")
    A("s_load_dwordx4 s[20:23], s[0:1], 64")
    A(f"v_lshrrev_b32 v{T}, 6, v0")
    A(f"v_and_b32 v{VLANE}, 63, v0")
    A(f"v_mov_b32 v{VTID}, v0")
    A(f"v_readfirstlane_b32 s3, v{T}")
    A(f"v_and_b32 v{VL32}, 31, v0")
    A(f"v_bfe_u32 v{VH}, v0, 5, 1")
    A("s_lshr_b32 s36, s2, 2")
    A("s_and_b32 s37, s2, 3")
    A("s_and_b32 s38, s3, 3")
    A("s_lshr_b32 s39, s3, 2")
    A("s_lshl_b32 s58, s2, 20")
    A("s_lshl_b32 s60, s38, 13")
    A("s_movk_i32 s80, 272")
    A("s_cmp_eq_u32 s39, 0")
    A("s_cbranch_scc0 L_v0")
    A(f"v_lshlrev_b32 v{VOFFA}, 4, v{VLANE}")
    A("s_branch L_v1")
    A("L_v0:")
    A(f"v_lshlrev_b32 v{VOFFA}, 4, v{VL32}")
    A(f"v_lshl_add_u32 v{VOFFA}, v{VH}, 11, v{VOFFA}")
    A("L_v1:")
    A(f"v_add_u32 v{VOFFA}, s60, v{VOFFA}")
    A(f"v_add_u32 v{VOFFB}, 4096, v{VOFFA}")
    A("s_waitcnt lgkmcnt(0)")
    A("s_cmp_eq_u32 s39, 0")
    A("s_cselect_b32 s24, s6, s8"); A("s_cselect_b32 s25, s7, s9")
    A("s_add_u32 s24, s24, s58"); A("s_addc_u32 s25, s25, 0")
    A("s_mov_b32 s26, 0x100000"); A("s_mov_b32 s27, 0x20000")
    def srd(d, p, off, size):
        A(f"s_add_u32 s{d}, s{p}, s{off}"); A(f"s_addc_u32 s{d+1}, s{p+1}, 0")
        A(f"s_mov_b32 s{d+2}, {size}"); A(f"s_mov_b32 s{d+3}, 0x20000")
    def rawload(role, Rr, n, wait=True):
        step = 1024 if role=="K" else 512
        vo = VOFFA if n<4 else VOFFB
        if wait: A(f"s_waitcnt vmcnt({D-1})")
        A(f"buffer_load_dwordx4 v[{Rr+4*n}:{Rr+4*n+3}], v{vo}, s[24:27], 0 offen offset:{(n%4)*step} {nt}")
        if n==3: A(f"v_add_u32 v{VOFFA}, 0x8000, v{VOFFA}")
        if n==7: A(f"v_add_u32 v{VOFFB}, 0x8000, v{VOFFB}")

    def kconst(b):
        for i in range(4):
            A(f"v_lshlrev_b32 v{S+2*i}, 16, v{b+i}")
            A(f"v_and_b32 v{S+2*i+1}, 0xffff0000, v{b+i}")
            A(f"v_lshlrev_b32 v{T+2}, 16, v{b+4+i}")
            A(f"v_and_b32 v{T+3}, 0xffff0000, v{b+4+i}")
            A(f"v_mul_f32 v{S+8+2*i}, -v{T+2}, v{S+2*i}")
            A(f"v_mul_f32 v{S+8+2*i+1}, -v{T+3}, v{S+2*i+1}")
        A(f"ds_write_b128 v{VX}, v[{S}:{S+3}]")
        A(f"ds_write_b128 v{VX}, v[{S+4}:{S+7}] offset:16")
        A(f"ds_write_b128 v{VX}, v[{S+8}:{S+11}] offset:512")
        A(f"ds_write_b128 v{VX}, v[{S+12}:{S+15}] offset:528")
    def vconst(b):
        for i in range(2):
            A(f"v_lshlrev_b32 v{P+2*i}, 16, v{b+8+i}")
            A(f"v_and_b32 v{P+2*i+1}, 0xffff0000, v{b+8+i}")
            A(f"v_lshlrev_b32 v{T+2}, 16, v{b+10+i}")
            A(f"v_and_b32 v{T+3}, 0xffff0000, v{b+10+i}")
            A(f"v_mul_f32 v{P+4+2*i}, -v{T+2}, v{P+2*i}")
            A(f"v_mul_f32 v{P+4+2*i+1}, -v{T+3}, v{P+2*i+1}")
        A(f"ds_write_b128 v{VX+1}, v[{P}:{P+3}]")
        A(f"ds_write_b128 v{VX+1}, v[{P+4}:{P+7}] offset:16")

    def cst_reads(role):
        if role=="K":
            A(f"ds_read_b128 v[{S}:{S+3}], v{VCST}")
            A(f"ds_read_b128 v[{S+4}:{S+7}], v{VCST} offset:512")
            A(f"v_add_u32 v{VCST}, 1024, v{VCST}")
            return 2
        else:
            A(f"ds_read_b128 v[{S}:{S+3}], v{VCST}")
            A(f"ds_read_b128 v[{S+4}:{S+7}], v{VCST} offset:16")
            A(f"ds_read_b128 v[{S+8}:{S+11}], v{VCST} offset:64")
            A(f"ds_read_b128 v[{S+12}:{S+15}], v{VCST} offset:80")
            A(f"v_add_u32 v{VCST}, 512, v{VCST}")
            return 4

    def produce(role, Rr, b, pts, vw):
        kb = b*STAGE; vb = kb + KBYTES
        A(f"s_waitcnt vmcnt({vw}) lgkmcnt(0)")
        for p in range(4):
            for (Rl, n) in pts.get(p, []): rawload(role, Rl, n)
            if role=="K":
                for n in (2*p, 2*p+1):
                    r = Rr+4*n
                    for j in range(4): A(f"v_cvt_f32_i32 v{r+j}, v{r+j}")
                    A(f"v_pk_fma_f32 v[{r}:{r+1}], v[{r}:{r+1}], v[{S}:{S+1}], v[{S+4}:{S+5}]")
                    A(f"v_pk_fma_f32 v[{r+2}:{r+3}], v[{r+2}:{r+3}], v[{S+2}:{S+3}], v[{S+6}:{S+7}]")
                    A(f"v_cvt_pk_bf16_f32 v{KF+2*n}, v{r}, v{r+1}")
                    A(f"v_cvt_pk_bf16_f32 v{KF+2*n+1}, v{r+2}, v{r+3}")
                    A(f"ds_write_b64 v{VWR}, v[{KF+2*n}:{KF+2*n+1}] offset:{kb+n*544}")
            else:
                for i in (2*p, 2*p+1):
                    r = Rr+4*i
                    cs = S + (i//4)*8 + i%4; cc = cs+4
                    x = cs & 1; c0 = cs & ~1; c1 = cc & ~1
                    for j in range(4): A(f"v_cvt_f32_i32 v{r+j}, v{r+j}")
                    for jj in (0, 2):
                        A(f"v_pk_fma_f32 v[{r+jj}:{r+jj+1}], v[{r+jj}:{r+jj+1}], v[{c0}:{c0+1}], v[{c1}:{c1+1}] op_sel:[0,{x},{x}] op_sel_hi:[1,{x},{x}]")
                for j in range(4):
                    A(f"v_cvt_pk_bf16_f32 v{KF+4*j+p}, v{Rr+8*p+j}, v{Rr+8*p+4+j}")
        if role=="V":
            for j in range(4):
                A(f"ds_write_b128 v{VWR}, v[{KF+4*j}:{KF+4*j+3}] offset:{vb+j*1024}")
        for (Rl, n) in pts.get(4, []): rawload(role, Rl, n)

    def consume(role, b, pts, last=False):
        kb = b*STAGE; vb = kb + KBYTES
        def pt(k):
            for (Rl, n) in pts.get(k, []): rawload(role, Rl, n)
        for s in range(8):
            A(f"ds_read_b128 v[{KF+4*s}:{KF+4*s+3}], v{VKRD} offset:{kb+s*32}")
        pt(0)
        for s in range(8):
            A(f"s_waitcnt lgkmcnt({7-s})")
            c = "0" if s==0 else f"v[{S}:{S+15}]"
            A(f"v_mfma_f32_32x32x16_bf16 v[{S}:{S+15}], v[{KF+4*s}:{KF+4*s+3}], v[{Q+4*s}:{Q+4*s+3}], {c}")
        for x in range(8):
            A(f"ds_read_b128 v[{KF+4*x}:{KF+4*x+3}], v{VVRD} offset:{vb+x*1024}")
        pt(1)
        A("s_nop 3" if not pts.get(1) else "s_nop 1")
        A(f"v_max3_f32 v{T}, v{S}, v{S+1}, v{S+2}")
        A(f"v_max3_f32 v{T+1}, v{S+3}, v{S+4}, v{S+5}")
        A(f"v_max3_f32 v{T+2}, v{S+6}, v{S+7}, v{S+8}")
        A(f"v_max3_f32 v{T+3}, v{S+9}, v{S+10}, v{S+11}")
        A(f"v_max3_f32 v{T}, v{T}, v{S+12}, v{S+13}")
        A(f"v_max3_f32 v{T+1}, v{T+1}, v{S+14}, v{S+15}")
        A(f"v_max3_f32 v{T}, v{T}, v{T+2}, v{T+3}")
        uid[0]+=1; u=uid[0]
        A(f"v_max_f32 v{T}, v{T}, v{T+1}")
        A(f"v_cmp_gt_f32 vcc, v{T}, v{MTH}")
        A("s_nop 1")
        A(f"s_cbranch_vccz L_nr{u}")
        C("some row's running max grew by more than 2^8: move the reference max to the true running max and rescale")
        A(f"v_max_f32 v{T}, v{T}, v{M}")
        A(f"v_mov_b32 v{T+1}, v{T}")
        A("s_nop 1")
        A(f"v_permlane32_swap_b32 v{T}, v{T+1}")
        A("s_nop 0")
        A(f"v_max_f32 v{T}, v{T}, v{T+1}")
        A(f"v_sub_f32 v{T+2}, v{M}, v{T}")
        A(f"v_mul_f32 v{T+2}, s40, v{T+2}")
        A(f"v_mul_f32 v{NMC}, s44, v{T}")
        A(f"v_exp_f32 v{ALPHA}, v{T+2}")
        A(f"v_mov_b32 v{M}, v{T}")
        A(f"v_add_f32 v{MTH}, s45, v{T}")
        A(f"v_pk_mul_f32 v[{LS2}:{LS2+1}], v[{LS2}:{LS2+1}], v[{ALPHA}:{ALPHA+1}] op_sel_hi:[1,0]")
        for i in range(0, 64, 2):
            A(f"v_pk_mul_f32 v[{O+i}:{O+i+1}], v[{O+i}:{O+i+1}], v[{ALPHA}:{ALPHA+1}] op_sel_hi:[1,0]")
        A(f"L_nr{u}:")
        for r in range(0, 16, 2):
            A(f"v_pk_fma_f32 v[{S+r}:{S+r+1}], v[{S+r}:{S+r+1}], s[40:41], v[{NMC}:{NMC+1}] op_sel_hi:[1,1,0]")
        for r in range(16):
            A(f"v_exp_f32 v{S+r}, v{S+r}")
        pt(2)
        for k in range(8):
            A(f"v_cvt_pk_bf16_f32 v{P+k}, v{S+2*k}, v{S+2*k+1}")
        for i in range(4):
            A(f"v_pk_add_f32 v[{T+2*i}:{T+2*i+1}], v[{S+4*i}:{S+4*i+1}], v[{S+4*i+2}:{S+4*i+3}]")
        A(f"v_pk_add_f32 v[{T}:{T+1}], v[{T}:{T+1}], v[{T+2}:{T+3}]")
        A(f"v_pk_add_f32 v[{T+4}:{T+5}], v[{T+4}:{T+5}], v[{T+6}:{T+7}]")
        nc = 0 if last else cst_reads(role)
        pt(3)
        A(f"s_waitcnt lgkmcnt({nc})")
        for s in range(2):
            for j in range(4):
                x = s*4+j
                A(f"v_mfma_f32_32x32x16_bf16 v[{O+16*j}:{O+16*j+15}], v[{KF+4*x}:{KF+4*x+3}], v[{P+4*s}:{P+4*s+3}], v[{O+16*j}:{O+16*j+15}]")
            if s==0:
                A(f"v_pk_add_f32 v[{T}:{T+1}], v[{T}:{T+1}], v[{T+4}:{T+5}]")
                A(f"v_pk_add_f32 v[{LS2}:{LS2+1}], v[{LS2}:{LS2+1}], v[{T}:{T+1}]")
        pt(4)

    def bar():
        A("s_waitcnt lgkmcnt(0)"); A("s_barrier")

    A("s_cmp_eq_u32 s39, 0")
    A("s_cbranch_scc0 L_V_entry")
    for role in ("K","V"):
        th = 0 if role=="K" else 1
        shifted = (role=="V")
        A(f"L_{role}_entry:")
        for n in range(NA): rawload(role, RA, n, False)
        A("s_lshl_b32 s43, s36, 15")
        A("s_lshl_b32 s56, s2, 13")
        A("s_lshl_b32 s57, s2, 12")
        srd(28, 10, 56, 8192)
        srd(32, 12, 56, 8192)
        srd(84, 14, 57, 4096)
        srd(48, 16, 57, 4096)
        srd(52, 4, 43, 32768)
        A(f"v_lshlrev_b32 v{T+4}, 4, v{VTID}")
        A(f"v_lshlrev_b32 v{T+5}, 3, v{VTID}")
        b = KF
        A(f"buffer_load_dwordx4 v[{b}:{b+3}], v{T+4}, s[28:31], 0 offen {nt}")
        A(f"buffer_load_dwordx4 v[{b+4}:{b+7}], v{T+4}, s[32:35], 0 offen {nt}")
        A(f"buffer_load_dwordx2 v[{b+8}:{b+9}], v{T+5}, s[84:87], 0 offen {nt}")
        A(f"buffer_load_dwordx2 v[{b+10}:{b+11}], v{T+5}, s[48:51], 0 offen {nt}")
        A(f"v_lshlrev_b32 v{T+2}, 4, v{VLANE}")
        A("s_lshl_b32 s60, s3, 12")
        A(f"v_add_u32 v{T+2}, s60, v{T+2}")
        for n in range(4):
            A(f"buffer_load_dwordx4 v[{Q+4*n}:{Q+4*n+3}], v{T+2}, s[52:55], 0 offen offset:{n*1024} {nt}")
        NB0 = 4
        for n in range(NA, 8): rawload(role, RA, n, False)
        for n in range(NB0): rawload(role, RB, n, False)
        stamp(4)
        A(f"s_mov_b32 s40, {f32bits(C_SCALE):#x}")
        A(f"s_mov_b32 s41, {f32bits(C_SCALE):#x}")
        A(f"s_mov_b32 s44, {f32bits(-C_SCALE):#x}")
        A(f"s_mov_b32 s45, {f32bits(TH):#x}")
        A("s_lshl_b32 s56, s36, 2")
        A("s_add_u32 s62, s20, s56"); A("s_addc_u32 s63, s21, 0")
        A("s_mov_b32 s42, 15")
        A("s_lshl_b32 s60, s39, 5")
        A(f"v_add_u32 v{T+3}, s60, v{VL32}")
        A(f"v_mul_lo_u32 v{VKRD}, v{T+3}, s80")
        A(f"v_lshl_add_u32 v{VKRD}, v{VH}, 4, v{VKRD}")
        A("s_lshl_b32 s60, s39, 13")
        A(f"v_lshlrev_b32 v{VVRD}, 4, v{VLANE}")
        A(f"v_add_u32 v{VVRD}, s60, v{VVRD}")
        if role=="K":
            A("s_lshl_b32 s60, s38, 4")
            A(f"v_add_u32 v{T+3}, s60, v{VH}")
            A(f"v_mul_lo_u32 v{VWR}, v{T+3}, s80")
            A(f"v_lshl_add_u32 v{VWR}, v{VL32}, 3, v{VWR}")
            A(f"v_lshlrev_b32 v{VCST}, 4, v{VL32}")
            A(f"v_add_u32 v{VCST}, {KC}, v{VCST}")
        else:
            A("s_lshl_b32 s60, s38, 12")
            A(f"v_lshlrev_b32 v{VWR}, 4, v{VLANE}")
            A(f"v_add_u32 v{VWR}, s60, v{VWR}")
            A("s_lshl_b32 s60, s38, 7")
            A(f"s_add_u32 s60, s60, {VC}")
            A(f"v_lshlrev_b32 v{VCST}, 5, v{VH}")
            A(f"v_add_u32 v{VCST}, s60, v{VCST}")
        for i in range(64): A(f"v_mov_b32 v{O+i}, 0")
        A(f"v_mov_b32 v{M}, {f32bits(-3.0e38):#x}")
        A(f"v_mov_b32 v{MTH}, {f32bits(-3.0e38):#x}")
        A(f"v_mov_b32 v{NMC}, 0")
        A(f"v_mov_b32 v{LS2}, 0"); A(f"v_mov_b32 v{LS2+1}, 0")
        A(f"v_mov_b32 v{VMBA}, {MBX}")
        A(f"v_mov_b32 v{VZ}, 0")
        A(f"v_lshrrev_b32 v{T}, 4, v{VTID}")
        A(f"v_and_b32 v{T+1}, 15, v{VTID}")
        A(f"v_lshlrev_b32 v{VX}, 10, v{T}")
        A(f"v_lshl_add_u32 v{VX}, v{T+1}, 5, v{VX}")
        A(f"v_add_u32 v{VX}, {KC}, v{VX}")
        A(f"v_lshlrev_b32 v{VX+1}, 5, v{VTID}")
        A(f"v_add_u32 v{VX+1}, {VC}, v{VX+1}")
        A(f"v_lshrrev_b32 v{T}, 4, v{VLANE}")
        A("s_lshl_b32 s60, s3, 4")
        A(f"v_add_u32 v{T}, s60, v{T}")
        A(f"v_mul_lo_u32 v{VX+2}, v{T}, s80")
        A(f"v_lshl_add_u32 v{VX+2}, v{T+1}, 4, v{VX+2}")
        A(f"v_add_u32 v{VX+2}, {QL}, v{VX+2}")
        A("s_lshl_b32 s60, s38, 5")
        A(f"v_add_u32 v{T}, s60, v{VL32}")
        A(f"v_mul_lo_u32 v{VX+3}, v{T}, s80")
        A(f"v_lshl_add_u32 v{VX+3}, v{VH}, 4, v{VX+3}")
        A(f"v_add_u32 v{VX+3}, {QL}, v{VX+3}")
        A(f"s_waitcnt vmcnt({NB0+8-NA})")
        stamp(5)
        kconst(KF); rawload(role, RB, 4); vconst(KF)
        for n in range(4):
            A(f"ds_write_b128 v{VX+2}, v[{Q+4*n}:{Q+4*n+3}] offset:{n*4*272}")
        rawload(role, RB, 5)
        bar()
        stamp(1)
        for s in range(8):
            A(f"ds_read_b128 v[{Q+4*s}:{Q+4*s+3}], v{VX+3} offset:{s*32}")
        cst_reads(role)
        produce(role, RA, 0, {1:[(RB,6)], 3:[(RB,7)]}, 6)
        if shifted:
            cst_reads(role)
            for n in range(4): rawload(role, RA, n)
        bar()
        stamp(2)
        def iteration(par, loads=True):
            Rc = (RA, RB)[par]; Rn = (RB, RA)[par]
            if not shifted:
                consume(role, par, {0:[(Rc,0)], 1:[(Rc,1)], 2:[(Rc,2)], 3:[(Rc,3)], 4:[(Rc,4)]} if loads else {})
                produce(role, Rn, 1-par, {1:[(Rc,5)], 3:[(Rc,6)], 4:[(Rc,7)]} if loads else {}, 5 if loads else 0)
            else:
                produce(role, Rn, 1-par, {0:[(Rc,4)], 2:[(Rc,5)], 4:[(Rc,6)]} if loads else {}, 4)
                consume(role, par, {0:[(Rc,7)], 1:[(Rn,0)], 2:[(Rn,1)], 3:[(Rn,2)], 4:[(Rn,3)]} if loads else {}, last=not loads)
            bar()
        A(f"L_{role}_loop:")
        iteration(0); iteration(1)
        A("s_sub_u32 s42, s42, 1")
        A("s_cmp_lg_u32 s42, 0")
        A(f"s_cbranch_scc1 L_{role}_loop")
        C("tiles 30 and 31: nothing left to load")
        iteration(0, loads=False)
        if role=="K" and EARLY:
            A("s_cmp_lg_u32 s3, 0")
            A("s_cbranch_scc1 L_e0")
            A(f"global_load_dword v{VPRE}, v{VZ}, s[62:63] sc1")
            A("L_e0:")
        consume(role, 1, {}, last=True)
        stamp(3)
        if role=="K" and not EARLY:
            A("s_cmp_lg_u32 s3, 0")
            A("s_cbranch_scc1 L_e0")
            A(f"global_load_dword v{VPRE}, v{VZ}, s[62:63] sc1")
            A("L_e0:")
        A(f"v_add_f32 v{LT}, v{LS2}, v{LS2+1}")
        A(f"v_mov_b32 v{T}, v{LT}")
        A("s_nop 1")
        A(f"v_permlane32_swap_b32 v{LT}, v{T}")
        A("s_nop 0")
        A(f"v_add_f32 v{LT}, v{LT}, v{T}")
        A(f"s_mul_i32 s56, s3, {SLOT}"); A(f"s_add_u32 s56, s56, {KC}")
        A("s_xor_b32 s58, s3, 4")
        A(f"s_mul_i32 s57, s58, {SLOT}"); A(f"s_add_u32 s57, s57, {KC}")
        A(f"v_lshlrev_b32 v{T+1}, 4, v{VLANE}")
        A(f"v_add_u32 v{T+2}, s56, v{T+1}")
        A(f"v_add_u32 v{T+3}, s57, v{T+1}")
        A(f"v_lshlrev_b32 v{T+1}, 3, v{VLANE}")
        A(f"v_add_u32 v{T+4}, s56, v{T+1}")
        A(f"v_add_u32 v{T+5}, s57, v{T+1}")
        A("s_lshl_b32 s56, s36, 5"); A("s_add_u32 s56, s56, s3")
        A(f"s_mul_i32 s56, s56, {WSLOT}")
        srd(28, 22, 56, WSLOT*25)
        k=0
        for j in range(4):
            for hh in range(2):
                r = O+16*j+8*(1-th)+4*hh
                A(f"ds_write_b128 v{T+2}, v[{r}:{r+3}] offset:{k*1024}")
                k+=1
        A(f"ds_write_b64 v{T+4}, v[{M}:{M+1}] offset:8192")
        A("s_waitcnt vmcnt(0)")
        if role=="K":
            A("s_cmp_lg_u32 s3, 0")
            A("s_cbranch_scc1 L_e1")
            A(f"ds_write_b32 v{VMBA}, v{VPRE}")
            A("L_e1:")
        A("s_waitcnt lgkmcnt(0)"); A("s_barrier")
        A(f"ds_read_b32 v{VX+1}, v{VMBA}")
        for k in range(8):
            A(f"ds_read_b128 v[{KF+4*k}:{KF+4*k+3}], v{T+3} offset:{k*1024}")
        A(f"ds_read_b64 v[{VX+4}:{VX+5}], v{T+5} offset:8192")
        A("s_waitcnt lgkmcnt(9)")
        A(f"v_readfirstlane_b32 s58, v{VX+1}")
        def pload():
            A(f"v_lshlrev_b32 v{T}, 4, v{VLANE}")
            A(f"v_lshlrev_b32 v{T+1}, 3, v{VLANE}")
            A(f"v_add_u32 v{T+1}, 4096, v{T+1}")
            for t in range(3):
                A(f"s_add_u32 s56, s37, {t+1}"); A("s_and_b32 s56, s56, 3"); A(f"s_mul_i32 s{88+t}, s56, {8*WSLOT}")
                A(f"v_add_u32 v{VX+2}, s{88+t}, v{T+1}")
                A(f"buffer_load_dwordx2 v[{P+2*t}:{P+2*t+1}], v{VX+2}, s[28:31], 0 offen sc1")
            for t in range(3):
                A(f"v_add_u32 v{VX}, s{88+t}, v{T}")
                for k in range(4):
                    r = RA+16*t+4*k
                    A(f"buffer_load_dwordx4 v[{r}:{r+3}], v{VX}, s[28:31], 0 offen offset:{k*1024} sc1")
        A("s_cmp_lt_u32 s58, 3")
        A(f"s_cbranch_scc1 L_{role}_nold")
        stamp(6)
        pload()
        A(f"L_{role}_nold:")
        A("s_waitcnt lgkmcnt(0)")
        A(f"v_max_f32 v{T}, v{M}, v{VX+4}")
        A(f"v_sub_f32 v{T+2}, v{M}, v{T}")
        A(f"v_sub_f32 v{T+4}, v{VX+4}, v{T}")
        A(f"v_mul_f32 v{T+2}, s40, v{T+2}")
        A(f"v_mul_f32 v{T+4}, s40, v{T+4}")
        A(f"v_exp_f32 v{T+2}, v{T+2}")
        A(f"v_exp_f32 v{T+4}, v{T+4}")
        A(f"v_mov_b32 v{M}, v{T}")
        A(f"v_mul_f32 v{LT}, v{LT}, v{T+2}")
        A(f"v_fmac_f32 v{LT}, v{VX+5}, v{T+4}")
        keep = [O+16*j+8*th+4*hh+c for j in range(4) for hh in range(2) for c in range(4)]
        for idx in range(0, 32, 2):
            r = keep[idx]
            A(f"v_pk_mul_f32 v[{r}:{r+1}], v[{r}:{r+1}], v[{T+2}:{T+3}] op_sel_hi:[1,0]")
            A(f"v_pk_fma_f32 v[{r}:{r+1}], v[{KF+idx}:{KF+idx+1}], v[{T+4}:{T+5}], v[{r}:{r+1}] op_sel_hi:[1,0,1]")
        A("s_cmp_ge_u32 s58, 3")
        A(f"s_cbranch_scc1 L_{role}_comb")
        C("publish this workgroup's partial, then count it")
        A(f"s_mul_i32 s56, s37, {8*WSLOT}")
        A(f"v_lshlrev_b32 v{T}, 4, v{VLANE}")
        A(f"v_add_u32 v{T}, s56, v{T}")
        A(f"v_lshlrev_b32 v{T+2}, 3, v{VLANE}")
        A(f"v_add_u32 v{T+2}, s56, v{T+2}")
        A(f"v_add_u32 v{T+2}, 4096, v{T+2}")
        A(f"buffer_store_dwordx2 v[{M}:{M+1}], v{T+2}, s[28:31], 0 offen sc1")
        for k in range(4):
            for c in range(4):
                r = keep[8*k+2*c]
                A(f"v_cvt_pk_bf16_f32 v{KF+4*k+c}, v{r}, v{r+1}")
            A(f"buffer_store_dwordx4 v[{KF+4*k}:{KF+4*k+3}], v{T}, s[28:31], 0 offen offset:{k*1024} sc1")
        A("s_waitcnt vmcnt(0)")
        A("s_barrier")
        if role=="K":
            A("s_cmp_lg_u32 s3, 0")
            A("s_cbranch_scc1 L_e2")
            A("s_mov_b64 exec, 1")
            A(f"v_mov_b32 v{VX}, 1")
            A(f"global_atomic_add v{VX+1}, v{VZ}, v{VX}, s[62:63] sc0")
            A("s_waitcnt vmcnt(0)")
            A(f"ds_write_b32 v{VMBA}, v{VX+1} offset:4")
            A("s_waitcnt lgkmcnt(0)")
            A("s_mov_b64 exec, -1")
            A("L_e2:")
        A("s_barrier")
        A(f"ds_read_b32 v{VX+1}, v{VMBA} offset:4")
        A("s_waitcnt lgkmcnt(0)")
        A(f"v_readfirstlane_b32 s58, v{VX+1}")
        stamp(6)
        A("s_cmp_ge_u32 s58, 3")
        A(f"s_cbranch_scc1 L_{role}_late")
        stamp_out(1)
        A("s_endpgm")
        A(f"L_{role}_late:")
        pload()
        A(f"L_{role}_comb:")
        srd(32, 18, 43, 32768)
        A("s_lshl_b32 s56, s38, 13")
        A(f"v_lshlrev_b32 v{VTID}, 8, v{VL32}")
        A(f"v_lshl_add_u32 v{VTID}, v{VH}, 5, v{VTID}")
        A(f"v_add_u32 v{VTID}, s56, v{VTID}")
        A("s_waitcnt vmcnt(12)")
        A(f"v_max3_f32 v{T}, v{M}, v{P}, v{P+2}")
        A(f"v_max_f32 v{T}, v{T}, v{P+4}")
        ms = [M, P, P+2, P+4]
        F = [VX, VX+2, VX+4, VX+6]
        for i, m in enumerate(ms):
            A(f"v_sub_f32 v{F[i]}, v{m}, v{T}")
        for i in range(4):
            A(f"v_mul_f32 v{F[i]}, s40, v{F[i]}")
        for i in range(4):
            A(f"v_exp_f32 v{F[i]}, v{F[i]}")
        A("s_nop 0")
        A(f"v_mul_f32 v{LT}, v{LT}, v{F[0]}")
        for i in range(3):
            A(f"v_fmac_f32 v{LT}, v{P+2*i+1}, v{F[1+i]}")
        A(f"v_rcp_f32 v{T}, v{LT}")
        A("s_nop 0")
        for i in range(4):
            A(f"v_mul_f32 v{F[i]}, v{F[i]}, v{T}")
        for idx in range(0, 32, 2):
            r = keep[idx]
            A(f"v_pk_mul_f32 v[{r}:{r+1}], v[{r}:{r+1}], v[{F[0]}:{F[0]+1}] op_sel_hi:[1,0]")
        for t in range(3):
            A(f"s_waitcnt vmcnt({8-4*t})")
            for i in range(16):
                src = RA+16*t+i; tmp = KF+2*i
                A(f"v_lshlrev_b32 v{tmp}, 16, v{src}")
                A(f"v_and_b32 v{tmp+1}, 0xffff0000, v{src}")
            for i in range(16):
                r = keep[2*i]; tmp = KF+2*i
                A(f"v_pk_fma_f32 v[{r}:{r+1}], v[{tmp}:{tmp+1}], v[{F[1+t]}:{F[1+t]+1}], v[{r}:{r+1}] op_sel_hi:[1,0,1]")
        for a in range(2):
            for c in range(4):
                r = 8*th+4*a+c
                A(f"v_cvt_pk_bf16_f32 v{S+8*a+2*c}, v{O+r}, v{O+16+r}")
                A(f"v_cvt_pk_bf16_f32 v{S+8*a+2*c+1}, v{O+32+r}, v{O+48+r}")
            A(f"buffer_store_dwordx4 v[{S+8*a}:{S+8*a+3}], v{VTID}, s[32:35], 0 offen offset:{128*th+64*a}")
            A(f"buffer_store_dwordx4 v[{S+8*a+4}:{S+8*a+7}], v{VTID}, s[32:35], 0 offen offset:{128*th+64*a+16}")
        if stamps:
            A("s_waitcnt vmcnt(0)")
            stamp(7)
            stamp_out(0)
        A("s_endpgm")
    A("L_end:"); A("s_endpgm")
    A('.section .rodata,"a"'); A(".p2align 6"); A(f".amdhsa_kernel {KNAME}")
    A("  .amdhsa_next_free_vgpr 256"); A("  .amdhsa_next_free_sgpr 96"); A("  .amdhsa_accum_offset 256")
    A("  .amdhsa_float_denorm_mode_32 3")
    A("  .amdhsa_group_segment_fixed_size 0"); A("  .amdhsa_kernarg_size 80"); A("  .amdhsa_user_sgpr_count 2")
    A("  .amdhsa_user_sgpr_kernarg_segment_ptr 1"); A("  .amdhsa_system_sgpr_workgroup_id_x 1"); A(".end_amdhsa_kernel")
    open(name, "w").write("\n".join(L) + "\n")

if __name__ == "__main__":
    kw = {}
    for a in sys.argv[2:]:
        if a == "--stamps": kw["stamps"] = 1
        elif a.startswith("--"):
            k, v = a[2:].split("=")
            kw[k] = tuple(int(x) for x in v.split(",")) if "," in v else int(v)
    gen(sys.argv[1], **kw)
```

```python
import sys, struct, math
KNAME = "standalone__kv_cache_quant_int4_int2_kv_with_per_channel_or_per_token_scales__sampling_kernel"
HDR = open("standalone__kv_cache_quant_int4_int2_kv_with_per_channel_or_per_token_scales__sampling.s.ref").read().split("; Override")[0]

def f32bits(x): return struct.unpack("<I", struct.pack("<f", x))[0]

O=0; Q=64; S=96; KF=112; P=144; RA=152; RB=184
M=216; LT=217; LS2=218; NMC=220; MTH=221; ALPHA=222
T=224
VKRD=232; VVRD=233; VWR=234; VCST=235; VOFFA=236; VOFFB=237; VLANE=238; VTID=239; VL32=240; VH=241
VX=242
VMBA=250; VPRE=251; VZ=252
STAGE=33792; KBYTES=17408
SLOT=8704
WSLOT=4608
C_SCALE = (128 ** -0.5) * math.log2(math.e)
TH = 8.0 / C_SCALE

def gen(name, nt="nt", stamps=0, D=3, EARLY=1, PRO=0, NA=8, MAP=0, QNT=1, DK=(0,0,0,0,0,0,0,0), DVV=(0,0,0,0,0,0,0,0), PRIO=0):
    NROW = 32
    QL=STAGE; KC=2*STAGE+1024; VC=KC+NROW*1024; MBX=KC+max(NROW*1536+1024, 8*SLOT); LDS_TOTAL=MBX+64
    L=[]; A=L.append
    uid=[0]
    def C(t): A("; " + t)
    def stamp(i):
        if stamps: A(f"s_memrealtime s[{64+2*i}:{65+2*i}]")
    def stamp_out(val):
        if not stamps: return
        A("s_waitcnt lgkmcnt(0)")
        A("s_lshl_b32 s56, s2, 3"); A("s_add_u32 s56, s56, s3"); A("s_lshl_b32 s56, s56, 6"); A("s_add_u32 s56, s56, 0x4000000")
        A("s_add_u32 s28, s22, s56"); A("s_addc_u32 s29, s23, 0"); A("s_mov_b32 s30, 64"); A("s_mov_b32 s31, 0x20000")
        A("s_mov_b64 exec, 1")
        for i in range(8):
            A(f"v_mov_b32 v{i}, s{64+2*i}")
        A("v_mov_b32 v8, 0"); A(f"v_mov_b32 v9, {val}")
        A("buffer_store_dwordx4 v[0:3], v8, s[28:31], 0 offen")
        A("buffer_store_dwordx4 v[4:7], v8, s[28:31], 0 offen offset:16")
        A("buffer_store_dword v9, v8, s[28:31], 0 offen offset:32")
    A(HDR.rstrip())
    C("Split-KV flash-decoding: 256 workgroups = 64 (b,hkv) x 4 token chunks of 2048; 8 waves each.")
    C("Waves 0-3 dequantise K, waves 4-7 dequantise V into LDS (bf16); every wave runs QK^T / softmax / PV")
    C("for 32 query rows x 32 tokens of each 64-token tile. Partials are merged by the workgroup that finishes last.")
    A(f"; @launch grid=(256,1,1) block=(512,1,1) lds={LDS_TOTAL}")
    A('.amdgcn_target "amdgcn-amd-amdhsa--gfx950"')
    A(".text"); A(f".globl {KNAME}"); A(".p2align 8"); A(f".type {KNAME},@function"); A(f"{KNAME}:")
    A("s_cmp_ge_u32 s2, 256"); A("s_cbranch_scc1 L_end")
    for i in range(8): stamp(i)
    A("s_load_dwordx16 s[4:19], s[0:1], 0")
    A("s_load_dwordx4 s[20:23], s[0:1], 64")
    A(f"v_lshrrev_b32 v{T}, 6, v0")
    A(f"v_and_b32 v{VLANE}, 63, v0")
    A(f"v_mov_b32 v{VTID}, v0")
    A(f"v_readfirstlane_b32 s3, v{T}")
    A(f"v_and_b32 v{VL32}, 31, v0")
    A(f"v_bfe_u32 v{VH}, v0, 5, 1")
    if MAP==1:
        A("s_and_b32 s56, s2, 7"); A("s_lshr_b32 s57, s2, 3")
        A("s_and_b32 s58, s57, 1"); A("s_and_b32 s59, s56, 1"); A("s_lshl_b32 s59, s59, 1"); A("s_add_u32 s58, s58, s59")
        A("s_lshr_b32 s57, s57, 1"); A("s_lshl_b32 s57, s57, 2"); A("s_lshr_b32 s56, s56, 1"); A("s_add_u32 s57, s57, s56")
        A("s_lshl_b32 s2, s57, 2"); A("s_add_u32 s2, s2, s58")
    if MAP==2:
        A("s_and_b32 s56, s2, 63"); A("s_lshr_b32 s57, s2, 6"); A("s_lshl_b32 s2, s56, 2"); A("s_add_u32 s2, s2, s57")
    A("s_lshr_b32 s36, s2, 2")
    A("s_and_b32 s37, s2, 3")
    A("s_and_b32 s38, s3, 3")
    A("s_lshr_b32 s39, s3, 2")
    A("s_lshl_b32 s58, s2, 20")
    A("s_lshl_b32 s60, s38, 13")
    A("s_movk_i32 s80, 272")
    A("s_cmp_eq_u32 s39, 0")
    A("s_cbranch_scc0 L_v0")
    A(f"v_lshlrev_b32 v{VOFFA}, 4, v{VLANE}")
    A("s_branch L_v1")
    A("L_v0:")
    A(f"v_lshlrev_b32 v{VOFFA}, 4, v{VL32}")
    A(f"v_lshl_add_u32 v{VOFFA}, v{VH}, 11, v{VOFFA}")
    A("L_v1:")
    A(f"v_add_u32 v{VOFFA}, s60, v{VOFFA}")
    A(f"v_add_u32 v{VOFFB}, 4096, v{VOFFA}")
    A("s_waitcnt lgkmcnt(0)")
    A("s_cmp_eq_u32 s39, 0")
    A("s_cselect_b32 s24, s6, s8"); A("s_cselect_b32 s25, s7, s9")
    A("s_add_u32 s24, s24, s58"); A("s_addc_u32 s25, s25, 0")
    A("s_mov_b32 s26, 0x100000"); A("s_mov_b32 s27, 0x20000")
    def srd(d, p, off, size):
        A(f"s_add_u32 s{d}, s{p}, s{off}"); A(f"s_addc_u32 s{d+1}, s{p+1}, 0")
        A(f"s_mov_b32 s{d+2}, {size}"); A(f"s_mov_b32 s{d+3}, 0x20000")
    def rawload(role, Rr, n, wait=True):
        step = 1024 if role=="K" else 512
        vo = VOFFA if n<4 else VOFFB
        if wait: A(f"s_waitcnt vmcnt({D-1+(DK if role=='K' else DVV)[n]})")
        A(f"buffer_load_dwordx4 v[{Rr+4*n}:{Rr+4*n+3}], v{vo}, s[24:27], 0 offen offset:{(n%4)*step} {nt}")
        if n==3: A(f"v_add_u32 v{VOFFA}, 0x8000, v{VOFFA}")
        if n==7: A(f"v_add_u32 v{VOFFB}, 0x8000, v{VOFFB}")

    def kconst(b):
        for i in range(4):
            A(f"v_lshlrev_b32 v{S+2*i}, 16, v{b+i}")
            A(f"v_and_b32 v{S+2*i+1}, 0xffff0000, v{b+i}")
            A(f"v_lshlrev_b32 v{T+2}, 16, v{b+4+i}")
            A(f"v_and_b32 v{T+3}, 0xffff0000, v{b+4+i}")
            A(f"v_mul_f32 v{S+8+2*i}, -v{T+2}, v{S+2*i}")
            A(f"v_mul_f32 v{S+8+2*i+1}, -v{T+3}, v{S+2*i+1}")
        A(f"ds_write_b128 v{VX}, v[{S}:{S+3}]")
        A(f"ds_write_b128 v{VX}, v[{S+4}:{S+7}] offset:16")
        A(f"ds_write_b128 v{VX}, v[{S+8}:{S+11}] offset:512")
        A(f"ds_write_b128 v{VX}, v[{S+12}:{S+15}] offset:528")
    def vconst(b):
        for i in range(2):
            A(f"v_lshlrev_b32 v{P+2*i}, 16, v{b+8+i}")
            A(f"v_and_b32 v{P+2*i+1}, 0xffff0000, v{b+8+i}")
            A(f"v_lshlrev_b32 v{T+2}, 16, v{b+10+i}")
            A(f"v_and_b32 v{T+3}, 0xffff0000, v{b+10+i}")
            A(f"v_mul_f32 v{P+4+2*i}, -v{T+2}, v{P+2*i}")
            A(f"v_mul_f32 v{P+4+2*i+1}, -v{T+3}, v{P+2*i+1}")
        A(f"ds_write_b128 v{VX+1}, v[{P}:{P+3}]")
        A(f"ds_write_b128 v{VX+1}, v[{P+4}:{P+7}] offset:16")

    def cst_reads(role):
        if role=="K":
            A(f"ds_read_b128 v[{S}:{S+3}], v{VCST}")
            A(f"ds_read_b128 v[{S+4}:{S+7}], v{VCST} offset:512")
            A(f"v_add_u32 v{VCST}, 1024, v{VCST}")
            return 2
        else:
            A(f"ds_read_b128 v[{S}:{S+3}], v{VCST}")
            A(f"ds_read_b128 v[{S+4}:{S+7}], v{VCST} offset:16")
            A(f"ds_read_b128 v[{S+8}:{S+11}], v{VCST} offset:64")
            A(f"ds_read_b128 v[{S+12}:{S+15}], v{VCST} offset:80")
            A(f"v_add_u32 v{VCST}, 512, v{VCST}")
            return 4

    def produce(role, Rr, b, pts, vw):
        kb = b*STAGE; vb = kb + KBYTES
        A(f"s_waitcnt vmcnt({vw}) lgkmcnt(0)")
        for p in range(4):
            for (Rl, n) in pts.get(p, []): rawload(role, Rl, n)
            if role=="K":
                for n in (2*p, 2*p+1):
                    r = Rr+4*n
                    for j in range(4): A(f"v_cvt_f32_i32 v{r+j}, v{r+j}")
                    A(f"v_pk_fma_f32 v[{r}:{r+1}], v[{r}:{r+1}], v[{S}:{S+1}], v[{S+4}:{S+5}]")
                    A(f"v_pk_fma_f32 v[{r+2}:{r+3}], v[{r+2}:{r+3}], v[{S+2}:{S+3}], v[{S+6}:{S+7}]")
                    A(f"v_cvt_pk_bf16_f32 v{KF+2*n}, v{r}, v{r+1}")
                    A(f"v_cvt_pk_bf16_f32 v{KF+2*n+1}, v{r+2}, v{r+3}")
                    A(f"ds_write_b64 v{VWR}, v[{KF+2*n}:{KF+2*n+1}] offset:{kb+n*544}")
            else:
                for i in (2*p, 2*p+1):
                    r = Rr+4*i
                    cs = S + (i//4)*8 + i%4; cc = cs+4
                    x = cs & 1; c0 = cs & ~1; c1 = cc & ~1
                    for j in range(4): A(f"v_cvt_f32_i32 v{r+j}, v{r+j}")
                    for jj in (0, 2):
                        A(f"v_pk_fma_f32 v[{r+jj}:{r+jj+1}], v[{r+jj}:{r+jj+1}], v[{c0}:{c0+1}], v[{c1}:{c1+1}] op_sel:[0,{x},{x}] op_sel_hi:[1,{x},{x}]")
                for j in range(4):
                    A(f"v_cvt_pk_bf16_f32 v{KF+4*j+p}, v{Rr+8*p+j}, v{Rr+8*p+4+j}")
        if role=="V":
            for j in range(4):
                A(f"ds_write_b128 v{VWR}, v[{KF+4*j}:{KF+4*j+3}] offset:{vb+j*1024}")
        for (Rl, n) in pts.get(4, []): rawload(role, Rl, n)

    def consume(role, b, pts, last=False):
        kb = b*STAGE; vb = kb + KBYTES
        def pt(k):
            for (Rl, n) in pts.get(k, []): rawload(role, Rl, n)
        for s in range(8):
            A(f"ds_read_b128 v[{KF+4*s}:{KF+4*s+3}], v{VKRD} offset:{kb+s*32}")
        pt(0)
        for s in range(8):
            A(f"s_waitcnt lgkmcnt({7-s})")
            c = "0" if s==0 else f"v[{S}:{S+15}]"
            A(f"v_mfma_f32_32x32x16_bf16 v[{S}:{S+15}], v[{KF+4*s}:{KF+4*s+3}], v[{Q+4*s}:{Q+4*s+3}], {c}")
        for x in range(8):
            A(f"ds_read_b128 v[{KF+4*x}:{KF+4*x+3}], v{VVRD} offset:{vb+x*1024}")
        pt(1)
        A("s_nop 3" if not pts.get(1) else "s_nop 1")
        A(f"v_max3_f32 v{T}, v{S}, v{S+1}, v{S+2}")
        A(f"v_max3_f32 v{T+1}, v{S+3}, v{S+4}, v{S+5}")
        A(f"v_max3_f32 v{T+2}, v{S+6}, v{S+7}, v{S+8}")
        A(f"v_max3_f32 v{T+3}, v{S+9}, v{S+10}, v{S+11}")
        A(f"v_max3_f32 v{T}, v{T}, v{S+12}, v{S+13}")
        A(f"v_max3_f32 v{T+1}, v{T+1}, v{S+14}, v{S+15}")
        A(f"v_max3_f32 v{T}, v{T}, v{T+2}, v{T+3}")
        uid[0]+=1; u=uid[0]
        A(f"v_max_f32 v{T}, v{T}, v{T+1}")
        A(f"v_cmp_gt_f32 vcc, v{T}, v{MTH}")
        A("s_nop 1")
        A(f"s_cbranch_vccz L_nr{u}")
        C("some row's running max grew by more than 2^8: move the reference max to the true running max and rescale")
        A(f"v_max_f32 v{T}, v{T}, v{M}")
        A(f"v_mov_b32 v{T+1}, v{T}")
        A("s_nop 1")
        A(f"v_permlane32_swap_b32 v{T}, v{T+1}")
        A("s_nop 0")
        A(f"v_max_f32 v{T}, v{T}, v{T+1}")
        A(f"v_sub_f32 v{T+2}, v{M}, v{T}")
        A(f"v_mul_f32 v{T+2}, s40, v{T+2}")
        A(f"v_mul_f32 v{NMC}, s44, v{T}")
        A(f"v_exp_f32 v{ALPHA}, v{T+2}")
        A(f"v_mov_b32 v{M}, v{T}")
        A(f"v_add_f32 v{MTH}, s45, v{T}")
        A(f"v_pk_mul_f32 v[{LS2}:{LS2+1}], v[{LS2}:{LS2+1}], v[{ALPHA}:{ALPHA+1}] op_sel_hi:[1,0]")
        for i in range(0, 64, 2):
            A(f"v_pk_mul_f32 v[{O+i}:{O+i+1}], v[{O+i}:{O+i+1}], v[{ALPHA}:{ALPHA+1}] op_sel_hi:[1,0]")
        A(f"L_nr{u}:")
        for r in range(0, 16, 2):
            A(f"v_pk_fma_f32 v[{S+r}:{S+r+1}], v[{S+r}:{S+r+1}], s[40:41], v[{NMC}:{NMC+1}] op_sel_hi:[1,1,0]")
        for r in range(16):
            A(f"v_exp_f32 v{S+r}, v{S+r}")
        pt(2)
        for k in range(8):
            A(f"v_cvt_pk_bf16_f32 v{P+k}, v{S+2*k}, v{S+2*k+1}")
        for i in range(4):
            A(f"v_pk_add_f32 v[{T+2*i}:{T+2*i+1}], v[{S+4*i}:{S+4*i+1}], v[{S+4*i+2}:{S+4*i+3}]")
        A(f"v_pk_add_f32 v[{T}:{T+1}], v[{T}:{T+1}], v[{T+2}:{T+3}]")
        A(f"v_pk_add_f32 v[{T+4}:{T+5}], v[{T+4}:{T+5}], v[{T+6}:{T+7}]")
        nc = 0 if last else cst_reads(role)
        pt(3)
        A(f"s_waitcnt lgkmcnt({nc})")
        for s in range(2):
            for j in range(4):
                x = s*4+j
                A(f"v_mfma_f32_32x32x16_bf16 v[{O+16*j}:{O+16*j+15}], v[{KF+4*x}:{KF+4*x+3}], v[{P+4*s}:{P+4*s+3}], v[{O+16*j}:{O+16*j+15}]")
            if s==0:
                A(f"v_pk_add_f32 v[{T}:{T+1}], v[{T}:{T+1}], v[{T+4}:{T+5}]")
                A(f"v_pk_add_f32 v[{LS2}:{LS2+1}], v[{LS2}:{LS2+1}], v[{T}:{T+1}]")
        pt(4)

    def bar():
        A("s_waitcnt lgkmcnt(0)"); A("s_barrier")

    A("s_cmp_eq_u32 s39, 0")
    A("s_cbranch_scc0 L_V_entry")
    for role in ("K","V"):
        th = 0 if role=="K" else 1
        shifted = (role=="V")
        A(f"L_{role}_entry:")
        for n in range(NA): rawload(role, RA, n, False)
        A("s_lshl_b32 s43, s36, 15")
        A("s_lshl_b32 s56, s2, 13")
        A("s_lshl_b32 s57, s2, 12")
        srd(28, 10, 56, 8192)
        srd(32, 12, 56, 8192)
        srd(84, 14, 57, 4096)
        srd(48, 16, 57, 4096)
        srd(52, 4, 43, 32768)
        A(f"v_lshlrev_b32 v{T+4}, 4, v{VTID}")
        A(f"v_lshlrev_b32 v{T+5}, 3, v{VTID}")
        b = KF
        A(f"buffer_load_dwordx4 v[{b}:{b+3}], v{T+4}, s[28:31], 0 offen {nt}")
        A(f"buffer_load_dwordx4 v[{b+4}:{b+7}], v{T+4}, s[32:35], 0 offen {nt}")
        A(f"buffer_load_dwordx2 v[{b+8}:{b+9}], v{T+5}, s[84:87], 0 offen {nt}")
        A(f"buffer_load_dwordx2 v[{b+10}:{b+11}], v{T+5}, s[48:51], 0 offen {nt}")
        A(f"v_lshlrev_b32 v{T+2}, 4, v{VLANE}")
        A("s_lshl_b32 s60, s3, 12")
        A(f"v_add_u32 v{T+2}, s60, v{T+2}")
        for n in range(4):
            A(f"buffer_load_dwordx4 v[{Q+4*n}:{Q+4*n+3}], v{T+2}, s[52:55], 0 offen offset:{n*1024} {nt if QNT else ''}")
        NB0 = 4
        for n in range(NA, 8): rawload(role, RA, n, False)
        for n in range(NB0): rawload(role, RB, n, False)
        stamp(4)
        A(f"s_mov_b32 s40, {f32bits(C_SCALE):#x}")
        A(f"s_mov_b32 s41, {f32bits(C_SCALE):#x}")
        A(f"s_mov_b32 s44, {f32bits(-C_SCALE):#x}")
        A(f"s_mov_b32 s45, {f32bits(TH):#x}")
        A("s_lshl_b32 s56, s36, 2")
        A("s_add_u32 s62, s20, s56"); A("s_addc_u32 s63, s21, 0")
        A("s_mov_b32 s42, 15")
        A("s_lshl_b32 s60, s39, 5")
        A(f"v_add_u32 v{T+3}, s60, v{VL32}")
        A(f"v_mul_lo_u32 v{VKRD}, v{T+3}, s80")
        A(f"v_lshl_add_u32 v{VKRD}, v{VH}, 4, v{VKRD}")
        A("s_lshl_b32 s60, s39, 13")
        A(f"v_lshlrev_b32 v{VVRD}, 4, v{VLANE}")
        A(f"v_add_u32 v{VVRD}, s60, v{VVRD}")
        if role=="K":
            A("s_lshl_b32 s60, s38, 4")
            A(f"v_add_u32 v{T+3}, s60, v{VH}")
            A(f"v_mul_lo_u32 v{VWR}, v{T+3}, s80")
            A(f"v_lshl_add_u32 v{VWR}, v{VL32}, 3, v{VWR}")
            A(f"v_lshlrev_b32 v{VCST}, 4, v{VL32}")
            A(f"v_add_u32 v{VCST}, {KC}, v{VCST}")
        else:
            A("s_lshl_b32 s60, s38, 12")
            A(f"v_lshlrev_b32 v{VWR}, 4, v{VLANE}")
            A(f"v_add_u32 v{VWR}, s60, v{VWR}")
            A("s_lshl_b32 s60, s38, 7")
            A(f"s_add_u32 s60, s60, {VC}")
            A(f"v_lshlrev_b32 v{VCST}, 5, v{VH}")
            A(f"v_add_u32 v{VCST}, s60, v{VCST}")
        for i in range(64): A(f"v_mov_b32 v{O+i}, 0")
        A(f"v_mov_b32 v{M}, {f32bits(-3.0e38):#x}")
        A(f"v_mov_b32 v{MTH}, {f32bits(-3.0e38):#x}")
        A(f"v_mov_b32 v{NMC}, 0")
        A(f"v_mov_b32 v{LS2}, 0"); A(f"v_mov_b32 v{LS2+1}, 0")
        A(f"v_mov_b32 v{VMBA}, {MBX}")
        A(f"v_mov_b32 v{VZ}, 0")
        A(f"v_lshrrev_b32 v{T}, 4, v{VTID}")
        A(f"v_and_b32 v{T+1}, 15, v{VTID}")
        A(f"v_lshlrev_b32 v{VX}, 10, v{T}")
        A(f"v_lshl_add_u32 v{VX}, v{T+1}, 5, v{VX}")
        A(f"v_add_u32 v{VX}, {KC}, v{VX}")
        A(f"v_lshlrev_b32 v{VX+1}, 5, v{VTID}")
        A(f"v_add_u32 v{VX+1}, {VC}, v{VX+1}")
        A(f"v_lshrrev_b32 v{T}, 4, v{VLANE}")
        A("s_lshl_b32 s60, s3, 4")
        A(f"v_add_u32 v{T}, s60, v{T}")
        A(f"v_mul_lo_u32 v{VX+2}, v{T}, s80")
        A(f"v_lshl_add_u32 v{VX+2}, v{T+1}, 4, v{VX+2}")
        A(f"v_add_u32 v{VX+2}, {QL}, v{VX+2}")
        A("s_lshl_b32 s60, s38, 5")
        A(f"v_add_u32 v{T}, s60, v{VL32}")
        A(f"v_mul_lo_u32 v{VX+3}, v{T}, s80")
        A(f"v_lshl_add_u32 v{VX+3}, v{VH}, 4, v{VX+3}")
        A(f"v_add_u32 v{VX+3}, {QL}, v{VX+3}")
        A(f"s_waitcnt vmcnt({NB0+8-NA})")
        stamp(5)
        kconst(KF); rawload(role, RB, 4); vconst(KF)
        for n in range(4):
            A(f"ds_write_b128 v{VX+2}, v[{Q+4*n}:{Q+4*n+3}] offset:{n*4*272}")
        rawload(role, RB, 5)
        bar()
        stamp(1)
        for s in range(8):
            A(f"ds_read_b128 v[{Q+4*s}:{Q+4*s+3}], v{VX+3} offset:{s*32}")
        cst_reads(role)
        produce(role, RA, 0, {1:[(RB,6)], 3:[(RB,7)]}, 6)
        if shifted:
            cst_reads(role)
            for n in range(4): rawload(role, RA, n)
        bar()
        stamp(2)
        def iteration(par, loads=True):
            Rc = (RA, RB)[par]; Rn = (RB, RA)[par]
            if not shifted:
                consume(role, par, {0:[(Rc,0)], 1:[(Rc,1)], 2:[(Rc,2)], 3:[(Rc,3)], 4:[(Rc,4)]} if loads else {})
                produce(role, Rn, 1-par, {1:[(Rc,5)], 3:[(Rc,6)], 4:[(Rc,7)]} if loads else {}, 5 if loads else 0)
            else:
                produce(role, Rn, 1-par, {0:[(Rc,4)], 2:[(Rc,5)], 4:[(Rc,6)]} if loads else {}, 4)
                consume(role, par, {0:[(Rc,7)], 1:[(Rn,0)], 2:[(Rn,1)], 3:[(Rn,2)], 4:[(Rn,3)]} if loads else {}, last=not loads)
            bar()
        if PRIO and role==("V" if PRIO==1 else "K"): A("s_setprio 1")
        A(f"L_{role}_loop:")
        iteration(0); iteration(1)
        A("s_sub_u32 s42, s42, 1")
        A("s_cmp_lg_u32 s42, 0")
        A(f"s_cbranch_scc1 L_{role}_loop")
        C("tiles 30 and 31: nothing left to load")
        iteration(0, loads=False)
        if role=="K" and EARLY:
            A("s_cmp_lg_u32 s3, 0")
            A("s_cbranch_scc1 L_e0")
            A(f"global_load_dword v{VPRE}, v{VZ}, s[62:63] sc1")
            A("L_e0:")
        consume(role, 1, {}, last=True)
        stamp(3)
        if role=="K" and not EARLY:
            A("s_cmp_lg_u32 s3, 0")
            A("s_cbranch_scc1 L_e0")
            A(f"global_load_dword v{VPRE}, v{VZ}, s[62:63] sc1")
            A("L_e0:")
        A(f"v_add_f32 v{LT}, v{LS2}, v{LS2+1}")
        A(f"v_mov_b32 v{T}, v{LT}")
        A("s_nop 1")
        A(f"v_permlane32_swap_b32 v{LT}, v{T}")
        A("s_nop 0")
        A(f"v_add_f32 v{LT}, v{LT}, v{T}")
        A(f"s_mul_i32 s56, s3, {SLOT}"); A(f"s_add_u32 s56, s56, {KC}")
        A("s_xor_b32 s58, s3, 4")
        A(f"s_mul_i32 s57, s58, {SLOT}"); A(f"s_add_u32 s57, s57, {KC}")
        A(f"v_lshlrev_b32 v{T+1}, 4, v{VLANE}")
        A(f"v_add_u32 v{T+2}, s56, v{T+1}")
        A(f"v_add_u32 v{T+3}, s57, v{T+1}")
        A(f"v_lshlrev_b32 v{T+1}, 3, v{VLANE}")
        A(f"v_add_u32 v{T+4}, s56, v{T+1}")
        A(f"v_add_u32 v{T+5}, s57, v{T+1}")
        A("s_lshl_b32 s56, s36, 5"); A("s_add_u32 s56, s56, s3")
        A(f"s_mul_i32 s56, s56, {WSLOT}")
        srd(28, 22, 56, WSLOT*25)
        k=0
        for j in range(4):
            for hh in range(2):
                r = O+16*j+8*(1-th)+4*hh
                A(f"ds_write_b128 v{T+2}, v[{r}:{r+3}] offset:{k*1024}")
                k+=1
        A(f"ds_write_b64 v{T+4}, v[{M}:{M+1}] offset:8192")
        A("s_waitcnt vmcnt(0)")
        if role=="K":
            A("s_cmp_lg_u32 s3, 0")
            A("s_cbranch_scc1 L_e1")
            A(f"ds_write_b32 v{VMBA}, v{VPRE}")
            A("L_e1:")
        A("s_waitcnt lgkmcnt(0)"); A("s_barrier")
        A(f"ds_read_b32 v{VX+1}, v{VMBA}")
        for k in range(8):
            A(f"ds_read_b128 v[{KF+4*k}:{KF+4*k+3}], v{T+3} offset:{k*1024}")
        A(f"ds_read_b64 v[{VX+4}:{VX+5}], v{T+5} offset:8192")
        A("s_waitcnt lgkmcnt(9)")
        A(f"v_readfirstlane_b32 s58, v{VX+1}")
        def pload():
            A(f"v_lshlrev_b32 v{T}, 4, v{VLANE}")
            A(f"v_lshlrev_b32 v{T+1}, 3, v{VLANE}")
            A(f"v_add_u32 v{T+1}, 4096, v{T+1}")
            for t in range(3):
                A(f"s_add_u32 s56, s37, {t+1}"); A("s_and_b32 s56, s56, 3"); A(f"s_mul_i32 s{88+t}, s56, {8*WSLOT}")
                A(f"v_add_u32 v{VX+2}, s{88+t}, v{T+1}")
                A(f"buffer_load_dwordx2 v[{P+2*t}:{P+2*t+1}], v{VX+2}, s[28:31], 0 offen sc1")
            for t in range(3):
                A(f"v_add_u32 v{VX}, s{88+t}, v{T}")
                for k in range(4):
                    r = RA+16*t+4*k
                    A(f"buffer_load_dwordx4 v[{r}:{r+3}], v{VX}, s[28:31], 0 offen offset:{k*1024} sc1")
        A("s_cmp_lt_u32 s58, 3")
        A(f"s_cbranch_scc1 L_{role}_nold")
        stamp(6)
        pload()
        A(f"L_{role}_nold:")
        A("s_waitcnt lgkmcnt(0)")
        A(f"v_max_f32 v{T}, v{M}, v{VX+4}")
        A(f"v_sub_f32 v{T+2}, v{M}, v{T}")
        A(f"v_sub_f32 v{T+4}, v{VX+4}, v{T}")
        A(f"v_mul_f32 v{T+2}, s40, v{T+2}")
        A(f"v_mul_f32 v{T+4}, s40, v{T+4}")
        A(f"v_exp_f32 v{T+2}, v{T+2}")
        A(f"v_exp_f32 v{T+4}, v{T+4}")
        A(f"v_mov_b32 v{M}, v{T}")
        A(f"v_mul_f32 v{LT}, v{LT}, v{T+2}")
        A(f"v_fmac_f32 v{LT}, v{VX+5}, v{T+4}")
        keep = [O+16*j+8*th+4*hh+c for j in range(4) for hh in range(2) for c in range(4)]
        for idx in range(0, 32, 2):
            r = keep[idx]
            A(f"v_pk_mul_f32 v[{r}:{r+1}], v[{r}:{r+1}], v[{T+2}:{T+3}] op_sel_hi:[1,0]")
            A(f"v_pk_fma_f32 v[{r}:{r+1}], v[{KF+idx}:{KF+idx+1}], v[{T+4}:{T+5}], v[{r}:{r+1}] op_sel_hi:[1,0,1]")
        A("s_cmp_ge_u32 s58, 3")
        A(f"s_cbranch_scc1 L_{role}_comb")
        C("publish this workgroup's partial, then count it")
        A(f"s_mul_i32 s56, s37, {8*WSLOT}")
        A(f"v_lshlrev_b32 v{T}, 4, v{VLANE}")
        A(f"v_add_u32 v{T}, s56, v{T}")
        A(f"v_lshlrev_b32 v{T+2}, 3, v{VLANE}")
        A(f"v_add_u32 v{T+2}, s56, v{T+2}")
        A(f"v_add_u32 v{T+2}, 4096, v{T+2}")
        A(f"buffer_store_dwordx2 v[{M}:{M+1}], v{T+2}, s[28:31], 0 offen sc1")
        for k in range(4):
            for c in range(4):
                r = keep[8*k+2*c]
                A(f"v_cvt_pk_bf16_f32 v{KF+4*k+c}, v{r}, v{r+1}")
            A(f"buffer_store_dwordx4 v[{KF+4*k}:{KF+4*k+3}], v{T}, s[28:31], 0 offen offset:{k*1024} sc1")
        if role=="K":
            A("s_cmp_lg_u32 s3, 0")
            A("s_cbranch_scc1 L_e3")
            A(f"global_load_dword v{VPRE}, v{VZ}, s[62:63] sc1")
            A("s_waitcnt vmcnt(0)")
            A(f"ds_write_b32 v{VMBA}, v{VPRE} offset:8")
            A("L_e3:")
        A("s_waitcnt vmcnt(0) lgkmcnt(0)")
        A("s_barrier")
        A(f"ds_read_b32 v{VX+1}, v{VMBA} offset:8")
        A("s_waitcnt lgkmcnt(0)")
        A(f"v_readfirstlane_b32 s58, v{VX+1}")
        A("s_cmp_ge_u32 s58, 3")
        A(f"s_cbranch_scc1 L_{role}_late")
        if role=="K":
            A("s_cmp_lg_u32 s3, 0")
            A("s_cbranch_scc1 L_e2")
            A("s_mov_b64 exec, 1")
            A(f"v_mov_b32 v{VX}, 1")
            A(f"global_atomic_add v{VX+1}, v{VZ}, v{VX}, s[62:63] sc0")
            A("s_waitcnt vmcnt(0)")
            A(f"ds_write_b32 v{VMBA}, v{VX+1} offset:4")
            A("s_waitcnt lgkmcnt(0)")
            A("s_mov_b64 exec, -1")
            A("L_e2:")
        A("s_barrier")
        A(f"ds_read_b32 v{VX+1}, v{VMBA} offset:4")
        A("s_waitcnt lgkmcnt(0)")
        A(f"v_readfirstlane_b32 s58, v{VX+1}")
        stamp(6)
        A("s_cmp_ge_u32 s58, 3")
        A(f"s_cbranch_scc1 L_{role}_late")
        stamp_out(1)
        A("s_endpgm")
        A(f"L_{role}_late:")
        pload()
        A(f"L_{role}_comb:")
        srd(32, 18, 43, 32768)
        A("s_lshl_b32 s56, s38, 13")
        A(f"v_lshlrev_b32 v{VTID}, 8, v{VL32}")
        A(f"v_lshl_add_u32 v{VTID}, v{VH}, 5, v{VTID}")
        A(f"v_add_u32 v{VTID}, s56, v{VTID}")
        A("s_waitcnt vmcnt(12)")
        A(f"v_max3_f32 v{T}, v{M}, v{P}, v{P+2}")
        A(f"v_max_f32 v{T}, v{T}, v{P+4}")
        ms = [M, P, P+2, P+4]
        F = [VX, VX+2, VX+4, VX+6]
        for i, m in enumerate(ms):
            A(f"v_sub_f32 v{F[i]}, v{m}, v{T}")
        for i in range(4):
            A(f"v_mul_f32 v{F[i]}, s40, v{F[i]}")
        for i in range(4):
            A(f"v_exp_f32 v{F[i]}, v{F[i]}")
        A("s_nop 0")
        A(f"v_mul_f32 v{LT}, v{LT}, v{F[0]}")
        for i in range(3):
            A(f"v_fmac_f32 v{LT}, v{P+2*i+1}, v{F[1+i]}")
        A(f"v_rcp_f32 v{T}, v{LT}")
        A("s_nop 0")
        for i in range(4):
            A(f"v_mul_f32 v{F[i]}, v{F[i]}, v{T}")
        for idx in range(0, 32, 2):
            r = keep[idx]
            A(f"v_pk_mul_f32 v[{r}:{r+1}], v[{r}:{r+1}], v[{F[0]}:{F[0]+1}] op_sel_hi:[1,0]")
        for t in range(3):
            A(f"s_waitcnt vmcnt({8-4*t})")
            for i in range(16):
                src = RA+16*t+i; tmp = KF+2*i
                A(f"v_lshlrev_b32 v{tmp}, 16, v{src}")
                A(f"v_and_b32 v{tmp+1}, 0xffff0000, v{src}")
            for i in range(16):
                r = keep[2*i]; tmp = KF+2*i
                A(f"v_pk_fma_f32 v[{r}:{r+1}], v[{tmp}:{tmp+1}], v[{F[1+t]}:{F[1+t]+1}], v[{r}:{r+1}] op_sel_hi:[1,0,1]")
        for a in range(2):
            for c in range(4):
                r = 8*th+4*a+c
                A(f"v_cvt_pk_bf16_f32 v{S+8*a+2*c}, v{O+r}, v{O+16+r}")
                A(f"v_cvt_pk_bf16_f32 v{S+8*a+2*c+1}, v{O+32+r}, v{O+48+r}")
            A(f"buffer_store_dwordx4 v[{S+8*a}:{S+8*a+3}], v{VTID}, s[32:35], 0 offen offset:{128*th+64*a}")
            A(f"buffer_store_dwordx4 v[{S+8*a+4}:{S+8*a+7}], v{VTID}, s[32:35], 0 offen offset:{128*th+64*a+16}")
        if stamps:
            A("s_waitcnt vmcnt(0)")
            stamp(7)
            stamp_out(0)
        A("s_endpgm")
    A("L_end:"); A("s_endpgm")
    A('.section .rodata,"a"'); A(".p2align 6"); A(f".amdhsa_kernel {KNAME}")
    A("  .amdhsa_next_free_vgpr 256"); A("  .amdhsa_next_free_sgpr 96"); A("  .amdhsa_accum_offset 256")
    A("  .amdhsa_float_denorm_mode_32 3")
    A("  .amdhsa_group_segment_fixed_size 0"); A("  .amdhsa_kernarg_size 80"); A("  .amdhsa_user_sgpr_count 2")
    A("  .amdhsa_user_sgpr_kernarg_segment_ptr 1"); A("  .amdhsa_system_sgpr_workgroup_id_x 1"); A(".end_amdhsa_kernel")
    open(name, "w").write("\n".join(L) + "\n")

if __name__ == "__main__":
    kw = {}
    for a in sys.argv[2:]:
        if a == "--stamps": kw["stamps"] = 1
        elif a.startswith("--"):
            k, v = a[2:].split("=")
            kw[k] = tuple(int(x) for x in v.split(",")) if "," in v else int(v)
    gen(sys.argv[1], **kw)
```
